```python
import torch

def _softmax(x, axis=-1):
    return torch.softmax(x, dim=axis)
def _gelu(x):
    return torch.nn.functional.gelu(x, approximate="tanh")
def _silu(x):
    return torch.nn.functional.silu(x)
def _sigmoid(x):
    return torch.sigmoid(x)
def _layernorm(x, axis=-1, eps=1e-5):
    m = x.mean(dim=axis, keepdim=True)
    v = x.var(dim=axis, keepdim=True, unbiased=False)
    return (x - m) / torch.sqrt(v + eps)
def _scatter_add(tgt, idx, src, axis=0):
    return tgt.clone().index_add_(axis, idx, src)
def _segment_sum(src, seg, n):
    out = torch.zeros((n,) + src.shape[1:], dtype=src.dtype)
    return out.index_add_(0, seg, src)
def _pad(x, pw):
    flat = tuple(v for pair in reversed(pw) for v in pair)
    return torch.nn.functional.pad(x, flat)

kernel_name = 'concat_heads__ssm_conv_h3__ssm_conv_h3__prompt'

def setup_inputs():

    _w = (lambda a: (lambda t: t.to(torch.bfloat16) if t.is_floating_point() else t)(torch.as_tensor(a)))
    def _A_setup():
        B, S, D = 1, 2048, 640
        ks = 4
        return {
            "q": _w((lambda *s: torch.randn(*s, dtype=torch.bfloat16) * 0.05)(B, S, D)),
            "k": _w((lambda *s: torch.randn(*s, dtype=torch.bfloat16) * 0.05)(B, S, D)),
            "v": _w((lambda *s: torch.randn(*s, dtype=torch.bfloat16) * 0.05)(B, S, D)),
            "shift_k": _w((lambda *s: torch.randn(*s, dtype=torch.bfloat16) * 0.05)(D, ks) * 0.5),
            "ssm_k": _w((lambda *s: torch.randn(*s, dtype=torch.bfloat16) * 0.05)(D, S) * (1.0 / S ** 0.5)),
            "ssm_D": _w((lambda *s: torch.randn(*s, dtype=torch.bfloat16) * 0.05)(D)),
        }
    _A_in = _A_setup()

    def _B_setup():
        B, S, D = 1, 2048, 640
        ks = 4
        return {
            "q": _w((lambda *s: torch.randn(*s, dtype=torch.bfloat16) * 0.05)(B, S, D)),
            "k": _w((lambda *s: torch.randn(*s, dtype=torch.bfloat16) * 0.05)(B, S, D)),
            "v": _w((lambda *s: torch.randn(*s, dtype=torch.bfloat16) * 0.05)(B, S, D)),
            "shift_k": _w((lambda *s: torch.randn(*s, dtype=torch.bfloat16) * 0.05)(D, ks) * 0.5),
            "ssm_k": _w((lambda *s: torch.randn(*s, dtype=torch.bfloat16) * 0.05)(D, S) * (1.0 / S ** 0.5)),
            "ssm_D": _w((lambda *s: torch.randn(*s, dtype=torch.bfloat16) * 0.05)(D)),
        }
    _B_in = _B_setup()

    return {
        "A_q": _A_in["q"],
        "A_k": _A_in["k"],
        "A_v": _A_in["v"],
        "A_shift_k": _A_in["shift_k"],
        "A_ssm_k": _A_in["ssm_k"],
        "A_ssm_D": _A_in["ssm_D"],
        "B_q": _B_in["q"],
        "B_k": _B_in["k"],
        "B_v": _B_in["v"],
        "B_shift_k": _B_in["shift_k"],
        "B_ssm_k": _B_in["ssm_k"],
        "B_ssm_D": _B_in["ssm_D"],
    }

def reference(A_q, A_k, A_v, A_shift_k, A_ssm_k, A_ssm_D, B_q, B_k, B_v, B_shift_k, B_ssm_k, B_ssm_D):
    def _A_ref(q, k, v, shift_k, ssm_k, ssm_D):
        B, S, D = q.shape
        ks = shift_k.shape[-1]
        k_pad = _pad(k, ((0, 0), (ks - 1, 0), (0, 0)))
        k_shift = torch.zeros_like(k)
        for t in range(ks):
            k_shift = k_shift + k_pad[:, t:t + S, :] * shift_k[:, ks - 1 - t][None, None, :]
        kv = k_shift * v
        L = 2 * S
        kv_pad = _pad(kv, ((0, 0), (0, S), (0, 0)))
        kf_pad = _pad(ssm_k, ((0, 0), (0, S)))
        kv_f = (lambda x, axes=(-2,-1): torch.fft.rfft2(x.float(), dim=axes))(kv_pad[:, None, :, :], axes=(1, 2))
        kf_f = (lambda x, axes=(-2,-1): torch.fft.rfft2(x.float(), dim=axes))(kf_pad[:, None, :], axes=(1, 2))
        kf_f = (lambda x, *d: x.permute(*d))(kf_f, 1, 2, 0)
        y_f = kv_f * kf_f[None, :, :, :]
        y = (lambda x, s, axes=(-2,-1): torch.fft.irfft2(x, s=s, dim=axes).to(torch.bfloat16))(y_f, (1, L), axes=(1, 2))[:, 0, :S, :]
        y = y + kv * ssm_D[None, None, :]
        return q * y

    def _B_ref(q, k, v, shift_k, ssm_k, ssm_D):
        B, S, D = q.shape
        ks = shift_k.shape[-1]
        k_pad = _pad(k, ((0, 0), (ks - 1, 0), (0, 0)))
        k_shift = torch.zeros_like(k)
        for t in range(ks):
            k_shift = k_shift + k_pad[:, t:t + S, :] * shift_k[:, ks - 1 - t][None, None, :]
        kv = k_shift * v
        L = 2 * S
        kv_pad = _pad(kv, ((0, 0), (0, S), (0, 0)))
        kf_pad = _pad(ssm_k, ((0, 0), (0, S)))
        kv_f = (lambda x, axes=(-2,-1): torch.fft.rfft2(x.float(), dim=axes))(kv_pad[:, None, :, :], axes=(1, 2))
        kf_f = (lambda x, axes=(-2,-1): torch.fft.rfft2(x.float(), dim=axes))(kf_pad[:, None, :], axes=(1, 2))
        kf_f = (lambda x, *d: x.permute(*d))(kf_f, 1, 2, 0)
        y_f = kv_f * kf_f[None, :, :, :]
        y = (lambda x, s, axes=(-2,-1): torch.fft.irfft2(x, s=s, dim=axes).to(torch.bfloat16))(y_f, (1, L), axes=(1, 2))[:, 0, :S, :]
        y = y + kv * ssm_D[None, None, :]
        return q * y

    a = _A_ref(A_q, A_k, A_v, A_shift_k, A_ssm_k, A_ssm_D)
    b = _B_ref(B_q, B_k, B_v, B_shift_k, B_ssm_k, B_ssm_D)
    return torch.concatenate([a, b], axis=-1)
```

```python
import sys, argparse

NAME = "concat_heads__ssm_conv_h3__ssm_conv_h3__prompt"

HEADER = open("cdna_kernels/%s.s.ref" % NAME).read().split("; Override launch geometry")[0]

HCP = 4576
HCH = 2 * HCP
HB = 0
XB = 8 * HCH
XCP = 4224
XCH = 2 * XCP
X0OFF = 16
X1OFF = X0OFF + XCP - 0
CTL = XB + 8 * XCH + 64
LDS_BYTES = CTL + 128

class Gen:
    def __init__(self):
        self.lines = []
        self.lab = 0
    def e(self, s):
        self.lines.append("    " + s)
    def l(self, s):
        self.lines.append(s + ":")
    def c(self, s):
        self.lines.append("    ; " + s)
    def newlab(self, p="L"):
        self.lab += 1
        return "%s_%d" % (p, self.lab)

def vr(b, n=1):
    return "v%d" % b if n == 1 else "v[%d:%d]" % (b, b + n - 1)
def sr(b, n=1):
    return "s%d" % b if n == 1 else "s[%d:%d]" % (b, b + n - 1)

def build(args):
    g = Gen()
    e = g.e
    NWG = 160 + args.npf
    STAMP = args.stamp
    def stamp(slot):
        if not STAMP: return
        e("s_memrealtime s[90:91]")
        e("s_waitcnt lgkmcnt(0)")
        e("v_mov_b32 v126, s90")
        e("v_mov_b32 v127, s91")
        e("v_mov_b32 v125, s96")
        e("s_mov_b64 s[98:99], exec")
        e("s_mov_b64 exec, 1")
        e("buffer_store_dwordx2 v[126:127], v125, s[92:95], 0 offen offset:%d" % (slot * 8))
        e("s_mov_b64 exec, s[98:99]")

    g.l(NAME + "_kernel")
    e("s_cmp_ge_u32 s2, %d" % NWG)
    e("s_cbranch_scc1 L_end")
    e("v_lshrrev_b32 v1, 6, v0")
    e("s_and_b32 s4, s2, 7")
    e("s_lshr_b32 s5, s2, 3")
    e("v_readfirstlane_b32 s3, v1")
    e("v_and_b32 v0, 63, v0")
    e("s_lshr_b32 s6, s4, 2")
    e("s_mul_i32 s7, s6, 48")
    e("s_add_u32 s8, s0, s7")
    e("s_addc_u32 s9, s1, 0")
    e("s_load_dwordx4 s[28:31], s[8:9], 0")
    e("s_load_dwordx4 s[32:35], s[8:9], 16")
    e("s_load_dwordx4 s[36:39], s[8:9], 32")
    e("s_load_dwordx2 s[24:25], s[0:1], 96")
    if STAMP:
        e("s_load_dwordx2 s[92:93], s[0:1], 112")
        e("s_mov_b32 s94, 0x1000000")
        e("s_mov_b32 s95, 0x20000")
        e("s_lshl_b32 s96, s2, 4")
        e("s_add_u32 s96, s96, s3")
        e("s_lshl_b32 s96, s96, 7")
    e("s_and_b32 s7, s4, 3")
    e("s_mul_i32 s7, s7, 160")
    e("s_lshl_b32 s10, s5, 3")
    e("s_add_u32 s10, s10, s7")
    if args.npf:
        e("s_cmp_ge_u32 s5, 20")
        e("s_cbranch_scc1 L_pf")
    e("v_lshlrev_b32 v1, 2, v0")
    e("v_and_b32 v1, 60, v1")
    e("v_add_u32 v1, %d, v1" % CTL)
    e("v_mov_b32 v2, 0")
    e("ds_write_b32 v1, v2")
    e("s_waitcnt lgkmcnt(0)")
    e("s_barrier")
    stamp(0)
    e("s_cmp_ge_u32 s3, 8")
    e("s_cbranch_scc1 L_mfma")

    K = 8
    V = 36
    T = 52
    XP = 84
    Q = 100
    VOFF = 1; VH = 2; VX1 = 3; VX0 = 4; VX0B = 5; VY = 6; VO = 7
    for (d, p, n) in ((12, 30, 2621440), (16, 32, 2621440), (20, 28, 2621440)):
        e("s_mov_b32 s%d, s%d" % (d, p))
        e("s_and_b32 s%d, s%d, 0xffff" % (d + 1, p + 1))
        e("s_mov_b32 s%d, %d" % (d + 2, n))
        e("s_mov_b32 s%d, 0x20000" % (d + 3))
    e("s_mul_i32 s11, s3, %d" % (256 * 1280))
    e("s_lshl_b32 s7, s10, 1")
    e("s_add_u32 s11, s11, s7")
    e("v_mul_u32_u24 v%d, 5120, v0" % VOFF)
    e("v_add_u32 v%d, s11, v%d" % (VOFF, VOFF))
    e("v_add_u32 v%d, -3840, v%d" % (VH, VOFF) if False else "v_subrev_u32 v%d, 3840, v%d" % (VH, VOFF))
    e("s_lshl_b32 s7, s10, 3")
    e("s_add_u32 s34, s34, s7")
    e("s_addc_u32 s35, s35, 0")
    e("s_load_dwordx16 s[40:55], s[34:35], 0")
    e("s_lshl_b32 s7, s10, 1")
    e("s_add_u32 s38, s38, s7")
    e("s_addc_u32 s39, s39, 0")
    e("s_load_dwordx4 s[28:31], s[38:39], 0")
    if args.gate:
        pass
    e("s_mov_b64 exec, 1")
    for r in range(3):
        e("buffer_load_dwordx4 %s, v%d, s[12:15], 0 offen offset:%d" % (vr(K + 4 * r, 4), VH, 1280 * r))
    e("s_mov_b64 exec, -1")
    for r in range(4):
        e("buffer_load_dwordx4 %s, v%d, s[12:15], 0 offen offset:%d" % (vr(K + 12 + 4 * r, 4), VOFF, 1280 * r))
        e("buffer_load_dwordx4 %s, v%d, s[16:19], 0 offen offset:%d" % (vr(V + 4 * r, 4), VOFF, 1280 * r))
    stamp(1)
    e("s_and_b32 s25, s25, 0xffff")
    e("s_mov_b32 s26, 5242880")
    e("s_mov_b32 s27, 0x20000")
    e("s_mul_i32 s11, s3, %d" % (256 * 2560))
    e("s_mul_i32 s7, s6, 1280")
    e("s_add_u32 s11, s11, s7")
    e("s_lshl_b32 s7, s10, 1")
    e("s_add_u32 s11, s11, s7")
    e("v_mul_u32_u24 v%d, 10240, v0" % VO)
    e("v_add_u32 v%d, s11, v%d" % (VO, VO))
    e("s_lshl_b32 s7, s3, 9")
    e("s_sub_u32 s11, %d, s7" % (XB + X1OFF + 4088))
    e("v_lshlrev_b32 v%d, 3, v0" % VX1)
    e("v_sub_u32 v%d, s11, v%d" % (VX1, VX1))
    e("v_subrev_u32 v%d, %d, v%d" % (VX0, XCP + 4, VX1))
    e("v_add_u32 v%d, 4, v%d" % (VX0B, VX0))
    e("s_lshr_b32 s7, s3, 1")
    e("s_lshl_b32 s7, s7, 10")
    e("s_sub_u32 s11, %d, s7" % (XB + X0OFF + 3136))
    e("s_and_b32 s7, s3, 1")
    e("s_lshl_b32 s7, s7, 9")
    e("s_add_u32 s11, s11, s7")
    e("v_lshlrev_b32 v%d, 3, v0" % VY)
    e("v_add_u32 v%d, s11, v%d" % (VY, VY))
    e("s_waitcnt lgkmcnt(0)")
    def W(c, j): return 56 + 4 * c + j
    for c in range(8):
        e("s_lshl_b32 s%d, s%d, 16" % (W(c, 0), 40 + 2 * c))
        e("s_and_b32 s%d, s%d, 0xffff0000" % (W(c, 1), 40 + 2 * c))
        e("s_lshl_b32 s%d, s%d, 16" % (W(c, 2), 41 + 2 * c))
        e("s_and_b32 s%d, s%d, 0xffff0000" % (W(c, 3), 41 + 2 * c))
    for d in range(4):
        e("s_lshl_b32 s%d, s%d, 16" % (40 + 2 * d, 28 + d))
        e("s_and_b32 s%d, s%d, 0xffff0000" % (41 + 2 * d, 28 + d))
    e("s_mov_b32 s48, 0xffff0000")
    e("s_waitcnt vmcnt(0)")
    stamp(2)
    e("s_nop 1")
    for r in range(3):
        for d in range(4):
            e("v_mov_b32_dpp v%d, v%d wave_shr:1 row_mask:0xf bank_mask:0xf" % (K + 4 * r + d, K + 4 * (r + 4) + d))
    for d in range(4):
        for r in range(7):
            e("v_lshlrev_b32 v%d, 16, v%d" % (T + r, K + 4 * r + d))
            e("v_and_b32 v%d, s48, v%d" % (T + 7 + r, K + 4 * r + d))
        A = T + 14
        U = T + 22
        for h in range(2):
            c = 2 * d + h
            for row in range(4):
                e("v_mul_f32 v%d, s%d, v%d" % (A + h * 4 + row, W(c, 3), T + 7 * h + row))
            for j in (2, 1, 0):
                for row in range(4):
                    e("v_fmac_f32 v%d, s%d, v%d" % (A + h * 4 + row, W(c, j), T + 7 * h + row + 3 - j))
        for row in range(4):
            e("v_lshlrev_b32 v%d, 16, v%d" % (U + row, V + 4 * row + d))
            e("v_and_b32 v%d, s48, v%d" % (U + 4 + row, V + 4 * row + d))
        for i in range(8):
            e("v_mul_f32 v%d, v%d, v%d" % (A + i, A + i, U + i))
        for h in range(2):
            c = 2 * d + h
            e("v_cvt_pk_bf16_f32 v%d, v%d, v%d" % (XP + 2 * c, A + h * 4 + 3, A + h * 4 + 2))
            e("v_cvt_pk_bf16_f32 v%d, v%d, v%d" % (XP + 2 * c + 1, A + h * 4 + 1, A + h * 4 + 0))
        for h in range(2):
            c = 2 * d + h
            e("ds_write_b64 v%d, %s offset:%d" % (VX1, vr(XP + 2 * c, 2), c * XCH))
        c = 2 * d
        e("ds_write2st64_b32 v%d, v%d, v%d offset0:%d offset1:%d" % (VX0, XP + 2 * c, XP + 2 * c + 2, 33 * c, 33 * (c + 1)))
        e("ds_write2st64_b32 v%d, v%d, v%d offset0:%d offset1:%d" % (VX0B, XP + 2 * c + 1, XP + 2 * c + 3, 33 * c, 33 * (c + 1)))
    e("s_lshl_b32 s7, s3, 2")
    e("s_add_u32 s7, s7, %d" % CTL)
    e("v_mov_b32 v%d, s7" % T)
    e("v_mov_b32 v%d, 1" % (T + 1))
    e("s_waitcnt lgkmcnt(0)")
    e("ds_write_b32 v%d, v%d" % (T, T + 1))
    stamp(3)
    for r in range(4):
        e("buffer_load_dwordx4 %s, v%d, s[20:23], 0 offen offset:%d" % (vr(Q + 4 * r, 4), VOFF, 1280 * r))
    Z = 8
    QF = 40
    for c in range(8):
        e("v_lshlrev_b32 v%d, 16, v%d" % (Z + 4 * c + 3, XP + 2 * c))
        e("v_and_b32 v%d, s48, v%d" % (Z + 4 * c + 2, XP + 2 * c))
        e("v_lshlrev_b32 v%d, 16, v%d" % (Z + 4 * c + 1, XP + 2 * c + 1))
        e("v_and_b32 v%d, s48, v%d" % (Z + 4 * c + 0, XP + 2 * c + 1))
        for row in range(4):
            e("v_mul_f32 v%d, s%d, v%d" % (Z + 4 * c + row, 40 + c, Z + 4 * c + row))
    e("s_waitcnt vmcnt(0)")
    stamp(4)
    for row in range(4):
        for d in range(4):
            e("v_lshlrev_b32 v%d, 16, v%d" % (QF + 4 * (2 * d) + row, Q + 4 * row + d))
            e("v_and_b32 v%d, s48, v%d" % (QF + 4 * (2 * d + 1) + row, Q + 4 * row + d))
    for i in range(32):
        e("v_mul_f32 v%d, v%d, v%d" % (Z + i, Z + i, QF + i))
    e("s_lshr_b32 s7, s3, 1")
    e("s_lshl_b32 s7, s7, 2")
    e("s_add_u32 s7, s7, %d" % (CTL + 32))
    e("v_mov_b32 v72, s7")
    lp = g.newlab("L_ywait")
    g.l(lp)
    e("ds_read_b32 v73, v72")
    e("s_waitcnt lgkmcnt(0)")
    e("v_readfirstlane_b32 s7, v73")
    e("s_cmp_ge_u32 s7, 8")
    e("s_cbranch_scc1 %s_done" % lp)
    e("s_sleep 2")
    e("s_branch %s" % lp)
    g.l(lp + "_done")
    stamp(5)
    Y = 84
    for c in range(8):
        e("ds_read_b64 %s, v%d offset:%d" % (vr(Y + 2 * c, 2), VY, c * XCH))
    O = 100
    for d in range(4):
        e("s_waitcnt lgkmcnt(%d)" % (6 - 2 * d))
        for h in range(2):
            c = 2 * d + h
            t = 72 + 4 * h
            e("v_lshlrev_b32 v%d, 16, v%d" % (t + 0, Y + 2 * c))
            e("v_and_b32 v%d, s48, v%d" % (t + 1, Y + 2 * c))
            e("v_lshlrev_b32 v%d, 16, v%d" % (t + 2, Y + 2 * c + 1))
            e("v_and_b32 v%d, s48, v%d" % (t + 3, Y + 2 * c + 1))
            for row in range(4):
                e("v_fmac_f32 v%d, v%d, v%d" % (Z + 4 * c + row, t + row, QF + 4 * c + row))
        for row in range(4):
            e("v_cvt_pk_bf16_f32 v%d, v%d, v%d" % (O + 4 * row + d, Z + 4 * (2 * d) + row, Z + 4 * (2 * d + 1) + row))
    e("v_add_u32 v72, 5120, v%d" % VO)
    e("buffer_store_dwordx4 %s, v%d, s[24:27], 0 offen" % (vr(O, 4), VO))
    e("buffer_store_dwordx4 %s, v%d, s[24:27], 0 offen offset:2560" % (vr(O + 4, 4), VO))
    e("buffer_store_dwordx4 %s, v72, s[24:27], 0 offen" % (vr(O + 8, 4)))
    e("buffer_store_dwordx4 %s, v72, s[24:27], 0 offen offset:2560" % (vr(O + 12, 4)))
    if STAMP:
        stamp(6)
        e("s_waitcnt vmcnt(0)")
        stamp(7)
    e("s_endpgm")

    g.l("L_mfma")
    e("s_sub_u32 s3, s3, 8")
    e("s_add_u32 s7, s10, s3")
    e("s_lshl_b32 s7, s7, 12")
    e("s_add_u32 s12, s36, s7")
    e("s_addc_u32 s13, s37, 0")
    e("s_and_b32 s13, s13, 0xffff")
    e("s_mov_b32 s14, 4096")
    e("s_mov_b32 s15, 0x20000")
    e("v_lshlrev_b32 v1, 4, v0")
    e("v_subrev_u32 v2, 4, v1")
    HD = 48
    HM = 64
    for b in range(4):
        e("buffer_load_dwordx4 %s, v1, s[12:15], 0 offen offset:%d" % (vr(HD + 4 * b, 4), 1024 * b))
        if b == 0:
            e("buffer_load_dword v%d, v2, s[12:15], 0 offen" % (HM + b))
        else:
            e("buffer_load_dword v%d, v1, s[12:15], 0 offen offset:%d" % (HM + b, 1024 * b - 4))
    e("s_mul_i32 s16, s3, %d" % HCH)
    e("s_mul_i32 s17, s3, %d" % XCH)
    e("s_add_u32 s17, s17, %d" % XB)
    for i in range(4):
        e("v_mov_b32 v%d, 0" % (4 + i))
    e("v_and_b32 v3, 31, v0")
    e("v_min_u32 v3, 27, v3")
    e("v_lshlrev_b32 v3, 4, v3")
    e("v_lshrrev_b32 v8, 5, v0")
    e("v_mul_u32_u24 v8, %d, v8" % HCP)
    e("v_add3_u32 v3, v3, v8, s16")
    e("ds_write_b128 v3, v[4:7]")
    e("v_and_b32 v3, 31, v0")
    e("v_min_u32 v3, 16, v3")
    e("v_lshlrev_b32 v3, 2, v3")
    e("v_lshrrev_b32 v8, 5, v0")
    e("v_mul_u32_u24 v8, %d, v8" % (XCP + 4))
    e("v_sub_u32 v3, v3, v8")
    e("v_add_u32 v3, s17, v3")
    e("ds_write_b32 v3, v4 offset:%d" % (X1OFF + 4096))
    ACC = 8
    for i in range(32):
        e("v_mov_b32 v%d, 0" % (ACC + i))
    VA = 1; VB = 2; VYW = 3
    e("v_add_u32 v40, s16, v1")
    e("v_and_b32 v41, 1, v0")
    e("v_xor_b32 v41, 1, v41")
    e("v_mul_u32_u24 v41, %d, v41" % HCP)
    e("v_bfe_u32 v42, v0, 1, 3")
    e("v_lshlrev_b32 v42, 6, v42")
    e("v_lshrrev_b32 v43, 4, v0")
    e("v_lshlrev_b32 v44, 4, v43")
    e("v_add3_u32 v41, v41, v42, v44")
    e("v_add_u32 v%d, s16, v41" % VA)
    e("v_and_b32 v41, 1, v0")
    e("v_mul_u32_u24 v41, %d, v41" % (XCP + 4))
    e("v_and_b32 v42, 15, v0")
    e("v_lshlrev_b32 v45, 2, v42")
    e("v_sub_u32 v41, v41, v45")
    e("v_add3_u32 v41, v41, v44, s17")
    e("v_add_u32 v%d, %d, v41" % (VB, X0OFF + 56))
    e("v_lshlrev_b32 v41, 7, v43")
    e("v_add3_u32 v41, v41, v45, s17")
    e("v_add_u32 v%d, %d, v41" % (VYW, X0OFF + 3136))
    for b in range(4):
        e("s_waitcnt vmcnt(%d)" % (6 - 2 * b))
        d = HD + 4 * b
        o = 68 + 4 * (b & 1)
        e("ds_write_b128 v40, %s offset:%d" % (vr(d, 4), 448 + 1024 * b))
        e("v_alignbit_b32 v%d, v%d, v%d, 16" % (o + 0, d + 0, HM + b))
        e("v_alignbit_b32 v%d, v%d, v%d, 16" % (o + 1, d + 1, d + 0))
        e("v_alignbit_b32 v%d, v%d, v%d, 16" % (o + 2, d + 2, d + 1))
        e("v_alignbit_b32 v%d, v%d, v%d, 16" % (o + 3, d + 3, d + 2))
        e("ds_write_b128 v40, %s offset:%d" % (vr(o, 4), HCP + 448 + 1024 * b))
    e("v_mov_b32 v4, %d" % CTL)
    e("v_mov_b32 v5, 1")
    e("s_waitcnt lgkmcnt(0)")
    stamp(1)
    SETS = (40, 80)
    def reads(f, st, dt):
        nA = 8 - 2 * f
        base = SETS[st]
        n = 0
        for qi in range(2):
            q = 2 * f + qi
            off = 512 * (7 - q) + 64 * dt
            e("ds_read_b64 %s, v%d offset:%d" % (vr(base + 32 + 4 * qi, 2), VB, off))
            e("ds_read_b64 %s, v%d offset:%d" % (vr(base + 34 + 4 * qi, 2), VB, off + 8))
            n += 2
        for p in range(nA):
            e("ds_read_b128 %s, v%d offset:%d" % (vr(base + 4 * p, 4), VA, 512 * p + 64 * dt))
            n += 1
        return n
    def mfmas(f, st):
        nA = 8 - 2 * f
        base = SETS[st]
        for p in range(nA):
            r = p + 2 * f
            e("v_mfma_f32_16x16x32_bf16 %s, %s, %s, %s" % (vr(ACC + 4 * r, 4), vr(base + 4 * p, 4), vr(base + 32, 4), vr(ACC + 4 * r, 4)))
        for p in range(nA - 1):
            r = p + 2 * f + 1
            e("v_mfma_f32_16x16x32_bf16 %s, %s, %s, %s" % (vr(ACC + 4 * r, 4), vr(base + 4 * p, 4), vr(base + 36, 4), vr(ACC + 4 * r, 4)))
    for f in range(4):
        lp = g.newlab("L_xwait")
        g.l(lp)
        e("ds_read_b64 v[6:7], v4 offset:%d" % (8 * f))
        e("s_waitcnt lgkmcnt(0)")
        e("v_and_b32 v6, v6, v7")
        e("s_nop 0")
        e("v_readfirstlane_b32 s7, v6")
        e("s_cmp_lg_u32 s7, 0")
        e("s_cbranch_scc1 %s_done" % lp)
        e("s_sleep 2")
        e("s_branch %s" % lp)
        g.l(lp + "_done")
        stamp(2 + 2 * f)
        n = reads(f, 0, 0)
        e("s_mov_b32 s18, 0")
        lp = g.newlab("L_t")
        g.l(lp)
        reads(f, 1, 1)
        e("s_waitcnt lgkmcnt(%d)" % n)
        mfmas(f, 0)
        e("s_cmp_eq_u32 s18, 3")
        e("s_cbranch_scc1 %s_last" % lp)
        reads(f, 0, 2)
        e("s_waitcnt lgkmcnt(%d)" % n)
        mfmas(f, 1)
        e("v_add_u32 v%d, 128, v%d" % (VA, VA))
        e("v_add_u32 v%d, 128, v%d" % (VB, VB))
        e("s_add_u32 s18, s18, 1")
        e("s_branch %s" % lp)
        g.l(lp + "_last")
        e("s_waitcnt lgkmcnt(0)")
        mfmas(f, 1)
        e("v_subrev_u32 v%d, 384, v%d" % (VA, VA))
        e("v_subrev_u32 v%d, 384, v%d" % (VB, VB))
        e("s_nop 7")
        for ti in range(2):
            r = 2 * f + ti
            e("v_cvt_pk_bf16_f32 v%d, v%d, v%d" % (40 + 2 * ti, ACC + 4 * r, ACC + 4 * r + 1))
            e("v_cvt_pk_bf16_f32 v%d, v%d, v%d" % (41 + 2 * ti, ACC + 4 * r + 2, ACC + 4 * r + 3))
        for ti in range(2):
            e("ds_write2_b32 v%d, v%d, v%d offset0:%d offset1:%d" % (VYW, 40 + 2 * ti, 41 + 2 * ti, 128 * ti, 128 * ti + 16))
        e("v_subrev_u32 v%d, 1024, v%d" % (VYW, VYW))
        e("s_waitcnt lgkmcnt(0)")
        e("s_mov_b64 exec, 1")
        e("ds_add_u32 v4, v5 offset:%d" % (32 + 4 * f))
        e("s_mov_b64 exec, -1")
        stamp(3 + 2 * f)
    e("s_endpgm")

    if args.npf:
        g.l("L_pf")
        NP = args.npf // 8
        e("s_waitcnt lgkmcnt(0)")
        for (d, p, n) in ((12, 30, 2621440), (16, 32, 2621440), (20, 28, 2621440)):
            e("s_mov_b32 s%d, s%d" % (d, p))
            e("s_and_b32 s%d, s%d, 0xffff" % (d + 1, p + 1))
            e("s_mov_b32 s%d, %d" % (d + 2, n))
            e("s_mov_b32 s%d, 0x20000" % (d + 3))
        e("s_sub_u32 s7, s5, 20")
        e("s_lshl_b32 s7, s7, 4")
        e("s_add_u32 s7, s7, s3")
        e("s_lshl_b32 s7, s7, 6")
        e("v_add_u32 v1, s7, v0")
        e("s_and_b32 s7, s4, 3")
        e("s_mul_i32 s7, s7, 320")
        e("s_and_b32 s11, s7, 0xffffff80")
        e("s_mov_b32 s7, 0xAAAB")
        nit = (6144 + NP * 1024 - 1) // (NP * 1024)
        for it in range(nit):
            e("v_add_u32 v2, %d, v1" % (it * NP * 1024))
            e("v_mul_u32_u24 v3, s7, v2")
            e("v_lshrrev_b32 v3, 17, v3")
            e("v_mul_u32_u24 v4, 3, v3")
            e("v_sub_u32 v4, v2, v4")
            e("v_mul_u32_u24 v3, 1280, v3")
            e("v_lshlrev_b32 v4, 7, v4")
            e("v_add3_u32 v%d, v3, v4, s11" % (8 + it))
        for it in range(nit):
            e("buffer_load_dword v%d, v%d, s[12:15], 0 offen" % (20 + 3 * it, 8 + it))
            e("buffer_load_dword v%d, v%d, s[16:19], 0 offen" % (21 + 3 * it, 8 + it))
        for it in range(nit):
            e("buffer_load_dword v%d, v%d, s[20:23], 0 offen" % (22 + 3 * it, 8 + it))
        e("s_waitcnt vmcnt(0)")
    g.l("L_end")
    e("s_endpgm")

    out = HEADER
    out += "; @launch grid=(%d,1,1) block=(1024,1,1) lds=%d\n" % (NWG, LDS_BYTES)
    out += '.amdgcn_target "amdgcn-amd-amdhsa--gfx950"\n.text\n.globl %s_kernel\n.p2align 8\n.type %s_kernel,@function\n' % (NAME, NAME)
    out += "\n".join(g.lines) + "\n"
    out += '''.section .rodata,"a"
.p2align 6
.amdhsa_kernel %s_kernel
  .amdhsa_next_free_vgpr 128
  .amdhsa_next_free_sgpr 102
  .amdhsa_accum_offset 128
  .amdhsa_group_segment_fixed_size 0
  .amdhsa_kernarg_size 120
  .amdhsa_user_sgpr_count 2
  .amdhsa_user_sgpr_kernarg_segment_ptr 1
  .amdhsa_system_sgpr_workgroup_id_x 1
  .amdhsa_float_denorm_mode_32 3
.end_amdhsa_kernel
''' % NAME
    return out

if __name__ == "__main__":
    ap = argparse.ArgumentParser()
    ap.add_argument("-o", default="cdna_kernels/%s.s" % NAME)
    ap.add_argument("--npf", type=int, default=0)
    ap.add_argument("--gate", type=int, default=0)
    ap.add_argument("--stamp", type=int, default=0)
    a = ap.parse_args()
    open(a.o, "w").write(build(a))
    print("wrote", a.o, "LDS", LDS_BYTES)
```

```python
import sys, argparse

NAME = "concat_heads__ssm_conv_h3__ssm_conv_h3__prompt"

HEADER = open("cdna_kernels/%s.s.ref" % NAME).read().split("; Override launch geometry")[0]

HCP = 4576
HCH = 2 * HCP
HB = 0
XB = 8 * HCH
XCP = 4224
XCH = 2 * XCP
X0OFF = 16
X1OFF = X0OFF + XCP - 0
CTL = XB + 8 * XCH + 64
LDS_BYTES = CTL + 128

class Gen:
    def __init__(self):
        self.lines = []
        self.lab = 0
    def e(self, s):
        self.lines.append("    " + s)
    def l(self, s):
        self.lines.append(s + ":")
    def c(self, s):
        self.lines.append("    ; " + s)
    def newlab(self, p="L"):
        self.lab += 1
        return "%s_%d" % (p, self.lab)

def vr(b, n=1):
    return "v%d" % b if n == 1 else "v[%d:%d]" % (b, b + n - 1)
def sr(b, n=1):
    return "s%d" % b if n == 1 else "s[%d:%d]" % (b, b + n - 1)

def build(args):
    g = Gen()
    e = g.e
    NWG = 160 + args.npf
    NIO = " nt" if args.ntio else ""
    NH = " nt" if args.nth else ""
    NPFX = " nt" if args.ntpf else ""
    NST = " nt" if args.ntst else ""
    STAMP = args.stamp
    def stamp(slot):
        if not STAMP: return
        e("s_memrealtime s[90:91]")
        e("s_waitcnt lgkmcnt(0)")
        e("v_mov_b32 v126, s90")
        e("v_mov_b32 v127, s91")
        e("v_mov_b32 v125, s96")
        e("s_mov_b64 s[98:99], exec")
        e("s_mov_b64 exec, 1")
        e("buffer_store_dwordx2 v[126:127], v125, s[92:95], 0 offen offset:%d" % (slot * 8))
        e("s_mov_b64 exec, s[98:99]")

    g.l(NAME + "_kernel")
    e("s_cmp_ge_u32 s2, %d" % NWG)
    e("s_cbranch_scc1 L_end")
    e("v_lshrrev_b32 v1, 6, v0")
    e("s_and_b32 s4, s2, 7")
    e("s_lshr_b32 s5, s2, 3")
    e("v_readfirstlane_b32 s3, v1")
    e("v_and_b32 v0, 63, v0")
    e("s_lshr_b32 s6, s4, 2")
    e("s_mul_i32 s7, s6, 48")
    e("s_add_u32 s8, s0, s7")
    e("s_addc_u32 s9, s1, 0")
    e("s_load_dwordx4 s[28:31], s[8:9], 0")
    e("s_load_dwordx4 s[32:35], s[8:9], 16")
    e("s_load_dwordx4 s[36:39], s[8:9], 32")
    e("s_load_dwordx2 s[24:25], s[0:1], 96")
    if STAMP:
        e("s_load_dwordx2 s[92:93], s[0:1], 112")
        e("s_mov_b32 s94, 0x1000000")
        e("s_mov_b32 s95, 0x20000")
        e("s_lshl_b32 s96, s2, 4")
        e("s_add_u32 s96, s96, s3")
        e("s_lshl_b32 s96, s96, 7")
    e("s_and_b32 s7, s4, 3")
    e("s_mul_i32 s7, s7, 160")
    e("s_lshl_b32 s10, s5, 3")
    e("s_add_u32 s10, s10, s7")
    if args.npf:
        e("s_cmp_ge_u32 s5, 20")
        e("s_cbranch_scc1 L_pf")
    e("v_lshlrev_b32 v1, 2, v0")
    e("v_and_b32 v1, 60, v1")
    e("v_add_u32 v1, %d, v1" % CTL)
    e("v_mov_b32 v2, 0")
    e("ds_write_b32 v1, v2")
    e("s_waitcnt lgkmcnt(0)")
    stamp(0)
    e("s_cmp_ge_u32 s3, 8")
    e("s_cbranch_scc1 L_mfma")

    K = 8
    V = 36
    T = 52
    XP = 84
    Q = 100
    VOFF = 1; VH = 2; VX1 = 3; VX0 = 4; VX0B = 5; VY = 6; VO = 7
    for (d, p, n) in ((12, 30, 2621440), (16, 32, 2621440), (20, 28, 2621440)):
        e("s_mov_b32 s%d, s%d" % (d, p))
        e("s_and_b32 s%d, s%d, 0xffff" % (d + 1, p + 1))
        e("s_mov_b32 s%d, %d" % (d + 2, n))
        e("s_mov_b32 s%d, 0x20000" % (d + 3))
    e("s_mul_i32 s11, s3, %d" % (256 * 1280))
    e("s_lshl_b32 s7, s10, 1")
    e("s_add_u32 s11, s11, s7")
    e("v_mul_u32_u24 v%d, 5120, v0" % VOFF)
    e("v_add_u32 v%d, s11, v%d" % (VOFF, VOFF))
    e("v_add_u32 v%d, -3840, v%d" % (VH, VOFF) if False else "v_subrev_u32 v%d, 3840, v%d" % (VH, VOFF))
    e("s_lshl_b32 s7, s10, 3")
    e("s_add_u32 s34, s34, s7")
    e("s_addc_u32 s35, s35, 0")
    e("s_load_dwordx16 s[40:55], s[34:35], 0")
    e("s_lshl_b32 s7, s10, 1")
    e("s_add_u32 s38, s38, s7")
    e("s_addc_u32 s39, s39, 0")
    e("s_load_dwordx4 s[28:31], s[38:39], 0")
    if args.gate:
        pass
    e("s_barrier")
    e("s_mov_b64 exec, 1")
    for r in range(3):
        e("buffer_load_dwordx4 %s, v%d, s[12:15], 0 offen offset:%d" % (vr(K + 4 * r, 4), VH, 1280 * r) + NIO)
    e("s_mov_b64 exec, -1")
    for r in range(4):
        e("buffer_load_dwordx4 %s, v%d, s[12:15], 0 offen offset:%d" % (vr(K + 12 + 4 * r, 4), VOFF, 1280 * r) + NIO)
        e("buffer_load_dwordx4 %s, v%d, s[16:19], 0 offen offset:%d" % (vr(V + 4 * r, 4), VOFF, 1280 * r) + NIO)
    stamp(1)
    e("s_and_b32 s25, s25, 0xffff")
    e("s_mov_b32 s26, 5242880")
    e("s_mov_b32 s27, 0x20000")
    e("s_mul_i32 s11, s3, %d" % (256 * 2560))
    e("s_mul_i32 s7, s6, 1280")
    e("s_add_u32 s11, s11, s7")
    e("s_lshl_b32 s7, s10, 1")
    e("s_add_u32 s11, s11, s7")
    e("v_mul_u32_u24 v%d, 10240, v0" % VO)
    e("v_add_u32 v%d, s11, v%d" % (VO, VO))
    e("s_lshl_b32 s7, s3, 9")
    e("s_sub_u32 s11, %d, s7" % (XB + X1OFF + 4088))
    e("v_lshlrev_b32 v%d, 3, v0" % VX1)
    e("v_sub_u32 v%d, s11, v%d" % (VX1, VX1))
    e("v_subrev_u32 v%d, %d, v%d" % (VX0, XCP + 4, VX1))
    e("v_add_u32 v%d, 4, v%d" % (VX0B, VX0))
    e("s_lshr_b32 s7, s3, 1")
    e("s_lshl_b32 s7, s7, 10")
    e("s_sub_u32 s11, %d, s7" % (XB + X0OFF + 3136))
    e("s_and_b32 s7, s3, 1")
    e("s_lshl_b32 s7, s7, 9")
    e("s_add_u32 s11, s11, s7")
    e("v_lshlrev_b32 v%d, 3, v0" % VY)
    e("v_add_u32 v%d, s11, v%d" % (VY, VY))
    e("s_waitcnt lgkmcnt(0)")
    def W(c, j): return 56 + 4 * c + j
    for c in range(8):
        e("s_lshl_b32 s%d, s%d, 16" % (W(c, 0), 40 + 2 * c))
        e("s_and_b32 s%d, s%d, 0xffff0000" % (W(c, 1), 40 + 2 * c))
        e("s_lshl_b32 s%d, s%d, 16" % (W(c, 2), 41 + 2 * c))
        e("s_and_b32 s%d, s%d, 0xffff0000" % (W(c, 3), 41 + 2 * c))
    for d in range(4):
        e("s_lshl_b32 s%d, s%d, 16" % (40 + 2 * d, 28 + d))
        e("s_and_b32 s%d, s%d, 0xffff0000" % (41 + 2 * d, 28 + d))
    e("s_mov_b32 s48, 0xffff0000")
    e("s_waitcnt vmcnt(0)")
    stamp(2)
    e("s_nop 1")
    for r in range(3):
        for d in range(4):
            e("v_mov_b32_dpp v%d, v%d wave_shr:1 row_mask:0xf bank_mask:0xf" % (K + 4 * r + d, K + 4 * (r + 4) + d))
    for d in range(4):
        for r in range(7):
            e("v_lshlrev_b32 v%d, 16, v%d" % (T + r, K + 4 * r + d))
            e("v_and_b32 v%d, s48, v%d" % (T + 7 + r, K + 4 * r + d))
        A = T + 14
        U = T + 22
        for h in range(2):
            c = 2 * d + h
            for row in range(4):
                e("v_mul_f32 v%d, s%d, v%d" % (A + h * 4 + row, W(c, 3), T + 7 * h + row))
            for j in (2, 1, 0):
                for row in range(4):
                    e("v_fmac_f32 v%d, s%d, v%d" % (A + h * 4 + row, W(c, j), T + 7 * h + row + 3 - j))
        for row in range(4):
            e("v_lshlrev_b32 v%d, 16, v%d" % (U + row, V + 4 * row + d))
            e("v_and_b32 v%d, s48, v%d" % (U + 4 + row, V + 4 * row + d))
        for i in range(8):
            e("v_mul_f32 v%d, v%d, v%d" % (A + i, A + i, U + i))
        for h in range(2):
            c = 2 * d + h
            e("v_cvt_pk_bf16_f32 v%d, v%d, v%d" % (XP + 2 * c, A + h * 4 + 3, A + h * 4 + 2))
            e("v_cvt_pk_bf16_f32 v%d, v%d, v%d" % (XP + 2 * c + 1, A + h * 4 + 1, A + h * 4 + 0))
        for h in range(2):
            c = 2 * d + h
            e("ds_write_b64 v%d, %s offset:%d" % (VX1, vr(XP + 2 * c, 2), c * XCH))
        c = 2 * d
        e("ds_write2st64_b32 v%d, v%d, v%d offset0:%d offset1:%d" % (VX0, XP + 2 * c, XP + 2 * c + 2, 33 * c, 33 * (c + 1)))
        e("ds_write2st64_b32 v%d, v%d, v%d offset0:%d offset1:%d" % (VX0B, XP + 2 * c + 1, XP + 2 * c + 3, 33 * c, 33 * (c + 1)))
    e("s_lshl_b32 s7, s3, 2")
    e("s_add_u32 s7, s7, %d" % CTL)
    e("v_mov_b32 v%d, s7" % T)
    e("v_mov_b32 v%d, 1" % (T + 1))
    e("s_waitcnt lgkmcnt(0)")
    e("ds_write_b32 v%d, v%d" % (T, T + 1))
    stamp(3)
    for r in range(4):
        e("buffer_load_dwordx4 %s, v%d, s[20:23], 0 offen offset:%d" % (vr(Q + 4 * r, 4), VOFF, 1280 * r) + NIO)
    Z = 8
    QF = 40
    for c in range(8):
        e("v_lshlrev_b32 v%d, 16, v%d" % (Z + 4 * c + 3, XP + 2 * c))
        e("v_and_b32 v%d, s48, v%d" % (Z + 4 * c + 2, XP + 2 * c))
        e("v_lshlrev_b32 v%d, 16, v%d" % (Z + 4 * c + 1, XP + 2 * c + 1))
        e("v_and_b32 v%d, s48, v%d" % (Z + 4 * c + 0, XP + 2 * c + 1))
        for row in range(4):
            e("v_mul_f32 v%d, s%d, v%d" % (Z + 4 * c + row, 40 + c, Z + 4 * c + row))
    e("s_waitcnt vmcnt(0)")
    stamp(4)
    for row in range(4):
        for d in range(4):
            e("v_lshlrev_b32 v%d, 16, v%d" % (QF + 4 * (2 * d) + row, Q + 4 * row + d))
            e("v_and_b32 v%d, s48, v%d" % (QF + 4 * (2 * d + 1) + row, Q + 4 * row + d))
    for i in range(32):
        e("v_mul_f32 v%d, v%d, v%d" % (Z + i, Z + i, QF + i))
    e("s_lshr_b32 s7, s3, 1")
    e("s_lshl_b32 s7, s7, 2")
    e("s_add_u32 s7, s7, %d" % (CTL + 32))
    e("v_mov_b32 v72, s7")
    lp = g.newlab("L_ywait")
    g.l(lp)
    e("ds_read_b32 v73, v72")
    e("s_waitcnt lgkmcnt(0)")
    e("v_readfirstlane_b32 s7, v73")
    e("s_cmp_ge_u32 s7, 8")
    e("s_cbranch_scc1 %s_done" % lp)
    e("s_sleep 2")
    e("s_branch %s" % lp)
    g.l(lp + "_done")
    stamp(5)
    Y = 84
    for c in range(8):
        e("ds_read_b64 %s, v%d offset:%d" % (vr(Y + 2 * c, 2), VY, c * XCH))
    O = 100
    for d in range(4):
        e("s_waitcnt lgkmcnt(%d)" % (6 - 2 * d))
        for h in range(2):
            c = 2 * d + h
            t = 72 + 4 * h
            e("v_lshlrev_b32 v%d, 16, v%d" % (t + 0, Y + 2 * c))
            e("v_and_b32 v%d, s48, v%d" % (t + 1, Y + 2 * c))
            e("v_lshlrev_b32 v%d, 16, v%d" % (t + 2, Y + 2 * c + 1))
            e("v_and_b32 v%d, s48, v%d" % (t + 3, Y + 2 * c + 1))
            for row in range(4):
                e("v_fmac_f32 v%d, v%d, v%d" % (Z + 4 * c + row, t + row, QF + 4 * c + row))
        for row in range(4):
            e("v_cvt_pk_bf16_f32 v%d, v%d, v%d" % (O + 4 * row + d, Z + 4 * (2 * d) + row, Z + 4 * (2 * d + 1) + row))
    e("v_add_u32 v72, 5120, v%d" % VO)
    e("buffer_store_dwordx4 %s, v%d, s[24:27], 0 offen" % (vr(O, 4), VO))
    e("buffer_store_dwordx4 %s, v%d, s[24:27], 0 offen offset:2560" % (vr(O + 4, 4), VO))
    e("buffer_store_dwordx4 %s, v72, s[24:27], 0 offen" % (vr(O + 8, 4)))
    e("buffer_store_dwordx4 %s, v72, s[24:27], 0 offen offset:2560" % (vr(O + 12, 4)))
    if STAMP:
        stamp(6)
        e("s_waitcnt vmcnt(0)")
        stamp(7)
    e("s_endpgm")

    g.l("L_mfma")
    e("s_sub_u32 s3, s3, 8")
    e("s_add_u32 s7, s10, s3")
    e("s_lshl_b32 s7, s7, 12")
    e("s_add_u32 s12, s36, s7")
    e("s_addc_u32 s13, s37, 0")
    e("s_and_b32 s13, s13, 0xffff")
    e("s_mov_b32 s14, 4096")
    e("s_mov_b32 s15, 0x20000")
    e("v_lshlrev_b32 v1, 4, v0")
    e("v_subrev_u32 v2, 4, v1")
    HD = 48
    HM = 64
    for b in range(4):
        e("buffer_load_dwordx4 %s, v1, s[12:15], 0 offen offset:%d" % (vr(HD + 4 * b, 4), 1024 * b) + NH)
        if b == 0:
            e("buffer_load_dword v%d, v2, s[12:15], 0 offen" % (HM + b) + NH)
        else:
            e("buffer_load_dword v%d, v1, s[12:15], 0 offen offset:%d" % (HM + b, 1024 * b - 4) + NH)
    e("s_barrier")
    e("s_mul_i32 s16, s3, %d" % HCH)
    e("s_mul_i32 s17, s3, %d" % XCH)
    e("s_add_u32 s17, s17, %d" % XB)
    for i in range(4):
        e("v_mov_b32 v%d, 0" % (4 + i))
    e("v_and_b32 v3, 31, v0")
    e("v_min_u32 v3, 27, v3")
    e("v_lshlrev_b32 v3, 4, v3")
    e("v_lshrrev_b32 v8, 5, v0")
    e("v_mul_u32_u24 v8, %d, v8" % HCP)
    e("v_add3_u32 v3, v3, v8, s16")
    e("ds_write_b128 v3, v[4:7]")
    e("v_and_b32 v3, 31, v0")
    e("v_min_u32 v3, 16, v3")
    e("v_lshlrev_b32 v3, 2, v3")
    e("v_lshrrev_b32 v8, 5, v0")
    e("v_mul_u32_u24 v8, %d, v8" % (XCP + 4))
    e("v_sub_u32 v3, v3, v8")
    e("v_add_u32 v3, s17, v3")
    e("ds_write_b32 v3, v4 offset:%d" % (X1OFF + 4096))
    ACC = 8
    for i in range(32):
        e("v_mov_b32 v%d, 0" % (ACC + i))
    VA = 1; VB = 2; VYW = 3
    e("v_add_u32 v40, s16, v1")
    e("v_and_b32 v41, 1, v0")
    e("v_xor_b32 v41, 1, v41")
    e("v_mul_u32_u24 v41, %d, v41" % HCP)
    e("v_bfe_u32 v42, v0, 1, 3")
    e("v_lshlrev_b32 v42, 6, v42")
    e("v_lshrrev_b32 v43, 4, v0")
    e("v_lshlrev_b32 v44, 4, v43")
    e("v_add3_u32 v41, v41, v42, v44")
    e("v_add_u32 v%d, s16, v41" % VA)
    e("v_and_b32 v41, 1, v0")
    e("v_mul_u32_u24 v41, %d, v41" % (XCP + 4))
    e("v_and_b32 v42, 15, v0")
    e("v_lshlrev_b32 v45, 2, v42")
    e("v_sub_u32 v41, v41, v45")
    e("v_add3_u32 v41, v41, v44, s17")
    e("v_add_u32 v%d, %d, v41" % (VB, X0OFF + 56))
    e("v_lshlrev_b32 v41, 7, v43")
    e("v_add3_u32 v41, v41, v45, s17")
    e("v_add_u32 v%d, %d, v41" % (VYW, X0OFF + 3136))
    for b in range(4):
        e("s_waitcnt vmcnt(%d)" % (6 - 2 * b))
        d = HD + 4 * b
        o = 68 + 4 * (b & 1)
        e("ds_write_b128 v40, %s offset:%d" % (vr(d, 4), 448 + 1024 * b))
        e("v_alignbit_b32 v%d, v%d, v%d, 16" % (o + 0, d + 0, HM + b))
        e("v_alignbit_b32 v%d, v%d, v%d, 16" % (o + 1, d + 1, d + 0))
        e("v_alignbit_b32 v%d, v%d, v%d, 16" % (o + 2, d + 2, d + 1))
        e("v_alignbit_b32 v%d, v%d, v%d, 16" % (o + 3, d + 3, d + 2))
        e("ds_write_b128 v40, %s offset:%d" % (vr(o, 4), HCP + 448 + 1024 * b))
    e("v_mov_b32 v4, %d" % CTL)
    e("v_mov_b32 v5, 1")
    e("s_waitcnt lgkmcnt(0)")
    stamp(1)
    SETS = (40, 80)
    def reads(f, st, dt):
        nA = 8 - 2 * f
        base = SETS[st]
        n = 0
        for qi in range(2):
            q = 2 * f + qi
            off = 512 * (7 - q) + 64 * dt
            e("ds_read_b64 %s, v%d offset:%d" % (vr(base + 32 + 4 * qi, 2), VB, off))
            e("ds_read_b64 %s, v%d offset:%d" % (vr(base + 34 + 4 * qi, 2), VB, off + 8))
            n += 2
        for p in range(nA):
            e("ds_read_b128 %s, v%d offset:%d" % (vr(base + 4 * p, 4), VA, 512 * p + 64 * dt))
            n += 1
        return n
    def mfmas(f, st):
        nA = 8 - 2 * f
        base = SETS[st]
        for p in range(nA):
            r = p + 2 * f
            e("v_mfma_f32_16x16x32_bf16 %s, %s, %s, %s" % (vr(ACC + 4 * r, 4), vr(base + 4 * p, 4), vr(base + 32, 4), vr(ACC + 4 * r, 4)))
        for p in range(nA - 1):
            r = p + 2 * f + 1
            e("v_mfma_f32_16x16x32_bf16 %s, %s, %s, %s" % (vr(ACC + 4 * r, 4), vr(base + 4 * p, 4), vr(base + 36, 4), vr(ACC + 4 * r, 4)))
    for f in range(4):
        lp = g.newlab("L_xwait")
        g.l(lp)
        e("ds_read_b64 v[6:7], v4 offset:%d" % (8 * f))
        e("s_waitcnt lgkmcnt(0)")
        e("v_and_b32 v6, v6, v7")
        e("s_nop 0")
        e("v_readfirstlane_b32 s7, v6")
        e("s_cmp_lg_u32 s7, 0")
        e("s_cbranch_scc1 %s_done" % lp)
        e("s_sleep 2")
        e("s_branch %s" % lp)
        g.l(lp + "_done")
        stamp(2 + 2 * f)
        n = reads(f, 0, 0)
        e("s_mov_b32 s18, 0")
        lp = g.newlab("L_t")
        g.l(lp)
        reads(f, 1, 1)
        e("s_waitcnt lgkmcnt(%d)" % n)
        mfmas(f, 0)
        e("s_cmp_eq_u32 s18, 3")
        e("s_cbranch_scc1 %s_last" % lp)
        reads(f, 0, 2)
        e("s_waitcnt lgkmcnt(%d)" % n)
        mfmas(f, 1)
        e("v_add_u32 v%d, 128, v%d" % (VA, VA))
        e("v_add_u32 v%d, 128, v%d" % (VB, VB))
        e("s_add_u32 s18, s18, 1")
        e("s_branch %s" % lp)
        g.l(lp + "_last")
        e("s_waitcnt lgkmcnt(0)")
        mfmas(f, 1)
        e("v_subrev_u32 v%d, 384, v%d" % (VA, VA))
        e("v_subrev_u32 v%d, 384, v%d" % (VB, VB))
        e("s_nop 7")
        for ti in range(2):
            r = 2 * f + ti
            e("v_cvt_pk_bf16_f32 v%d, v%d, v%d" % (40 + 2 * ti, ACC + 4 * r, ACC + 4 * r + 1))
            e("v_cvt_pk_bf16_f32 v%d, v%d, v%d" % (41 + 2 * ti, ACC + 4 * r + 2, ACC + 4 * r + 3))
        for ti in range(2):
            e("ds_write2_b32 v%d, v%d, v%d offset0:%d offset1:%d" % (VYW, 40 + 2 * ti, 41 + 2 * ti, 128 * ti, 128 * ti + 16))
        e("v_subrev_u32 v%d, 1024, v%d" % (VYW, VYW))
        e("s_waitcnt lgkmcnt(0)")
        e("s_mov_b64 exec, 1")
        e("ds_add_u32 v4, v5 offset:%d" % (32 + 4 * f))
        e("s_mov_b64 exec, -1")
        stamp(3 + 2 * f)
    e("s_endpgm")

    if args.npf:
        g.l("L_pf")
        NP = args.npf // 8
        e("s_waitcnt lgkmcnt(0)")
        for (d, p, n) in ((12, 30, 2621440), (16, 32, 2621440), (20, 28, 2621440)):
            e("s_mov_b32 s%d, s%d" % (d, p))
            e("s_and_b32 s%d, s%d, 0xffff" % (d + 1, p + 1))
            e("s_mov_b32 s%d, %d" % (d + 2, n))
            e("s_mov_b32 s%d, 0x20000" % (d + 3))
        e("s_sub_u32 s7, s5, 20")
        e("s_lshl_b32 s7, s7, 4")
        e("s_add_u32 s7, s7, s3")
        e("s_lshl_b32 s7, s7, 6")
        e("v_add_u32 v1, s7, v0")
        e("s_and_b32 s7, s4, 3")
        e("s_mul_i32 s7, s7, 320")
        e("s_and_b32 s11, s7, 0xffffff80")
        e("s_mov_b32 s7, 0xAAAB")
        nit = (6144 + NP * 1024 - 1) // (NP * 1024)
        for it in range(nit):
            e("v_add_u32 v2, %d, v1" % (it * NP * 1024))
            e("v_mul_u32_u24 v3, s7, v2")
            e("v_lshrrev_b32 v3, 17, v3")
            e("v_mul_u32_u24 v4, 3, v3")
            e("v_sub_u32 v4, v2, v4")
            e("v_mul_u32_u24 v3, 1280, v3")
            e("v_lshlrev_b32 v4, 7, v4")
            e("v_add3_u32 v%d, v3, v4, s11" % (8 + it))
        for it in range(nit):
            e("buffer_load_dword v%d, v%d, s[12:15], 0 offen" % (20 + 3 * it, 8 + it) + NPFX)
            e("buffer_load_dword v%d, v%d, s[16:19], 0 offen" % (21 + 3 * it, 8 + it) + NPFX)
        for it in range(nit):
            e("buffer_load_dword v%d, v%d, s[20:23], 0 offen" % (22 + 3 * it, 8 + it) + NPFX)
        e("s_waitcnt vmcnt(0)")
    g.l("L_end")
    e("s_endpgm")

    out = HEADER
    out += "; @launch grid=(%d,1,1) block=(1024,1,1) lds=%d\n" % (NWG, LDS_BYTES)
    out += '.amdgcn_target "amdgcn-amd-amdhsa--gfx950"\n.text\n.globl %s_kernel\n.p2align 8\n.type %s_kernel,@function\n' % (NAME, NAME)
    out += "\n".join(g.lines) + "\n"
    out += '''.section .rodata,"a"
.p2align 6
.amdhsa_kernel %s_kernel
  .amdhsa_next_free_vgpr 128
  .amdhsa_next_free_sgpr 102
  .amdhsa_accum_offset 128
  .amdhsa_group_segment_fixed_size 0
  .amdhsa_kernarg_size 120
  .amdhsa_user_sgpr_count 2
  .amdhsa_user_sgpr_kernarg_segment_ptr 1
  .amdhsa_system_sgpr_workgroup_id_x 1
  .amdhsa_float_denorm_mode_32 3
.end_amdhsa_kernel
''' % NAME
    return out

if __name__ == "__main__":
    ap = argparse.ArgumentParser()
    ap.add_argument("-o", default="cdna_kernels/%s.s" % NAME)
    ap.add_argument("--npf", type=int, default=0)
    ap.add_argument("--gate", type=int, default=0)
    ap.add_argument("--stamp", type=int, default=0)
    ap.add_argument("--ntio", type=int, default=0)
    ap.add_argument("--nth", type=int, default=0)
    ap.add_argument("--ntpf", type=int, default=0)
    ap.add_argument("--ntst", type=int, default=0)
    a = ap.parse_args()
    open(a.o, "w").write(build(a))
    print("wrote", a.o, "LDS", LDS_BYTES)
```

```python
import sys, argparse

NAME = "concat_heads__ssm_conv_h3__ssm_conv_h3__prompt"
HEADER = open("cdna_kernels/%s.s.ref" % NAME).read().split("; Override launch geometry")[0]

HCP_M = 4576; HCP_H = 2528
HSLOT = 4 * HCP_H
XB = 8 * HSLOT
XCH = 8960
XG = 4 * XCH + 64
XHALF = 4384
XCP_M = 4224; XCP_H = 2176
X0OFF = 16
CTL = XB + 8 * XCH + 128
LDS_BYTES = CTL + 128

class Gen:
    def __init__(self):
        self.lines = []; self.lab = 0
    def e(self, s): self.lines.append("    " + s)
    def l(self, s): self.lines.append(s + ":")
    def newlab(self, p="L"):
        self.lab += 1
        return "%s_%d" % (p, self.lab)

def vr(b, n=1):
    return "v%d" % b if n == 1 else "v[%d:%d]" % (b, b + n - 1)

def build(args):
    g = Gen(); e = g.e
    STAMP = args.stamp
    NH = " nt" if args.nth else ""
    def stamp(slot):
        if not STAMP: return
        if STAMP == 2 and slot != 0: return
        e("s_memtime s[90:91]" if STAMP == 3 else "s_memrealtime s[90:91]")
        e("s_waitcnt lgkmcnt(0)")
        if isinstance(slot, str):
            e("s_mov_b32 m0, %s" % slot); e("s_nop 0")
            e("v_writelane_b32 v127, s90, m0")
        else:
            e("v_writelane_b32 v127, s90, %s" % slot)
    def stamp_flush():
        if not STAMP: return
        e("s_waitcnt vmcnt(0)")
        e("s_memtime s[90:91]" if STAMP == 3 else "s_memrealtime s[90:91]")
        e("s_waitcnt lgkmcnt(0)")
        e("v_writelane_b32 v127, s90, 15")
        e("v_lshlrev_b32 v126, 2, v0")
        e("v_add_u32 v126, s96, v126")
        e("s_mov_b64 exec, 0xffff")
        e("buffer_store_dword v127, v126, s[92:95], 0 offen")
    def srd(d, p, n):
        if d != p: e("s_mov_b32 s%d, s%d" % (d, p))
        e("s_and_b32 s%d, s%d, 0xffff" % (d + 1, p + 1))
        e("s_mov_b32 s%d, %d" % (d + 2, n))
        e("s_mov_b32 s%d, 0x20000" % (d + 3))
    def sel(d, a, b):
        e("s_mov_b32 s%d, %d" % (d, b))
        e("s_cmov_b32 s%d, %d" % (d, a))

    NWG = 256 if args.pwg else 240
    g.l(NAME + "_kernel")
    e("s_cmp_ge_u32 s2, %d" % NWG)
    e("s_cbranch_scc1 L_end")
    e("v_lshrrev_b32 v1, 6, v0")
    e("s_and_b32 s4, s2, 7")
    e("s_lshr_b32 s5, s2, 3")
    e("v_readfirstlane_b32 s3, v1")
    e("v_and_b32 v0, 63, v0")
    e("s_lshr_b32 s6, s4, 2")
    e("s_mul_i32 s7, s6, 48")
    e("s_add_u32 s8, s0, s7")
    e("s_addc_u32 s9, s1, 0")
    e("s_load_dwordx4 s[28:31], s[8:9], 0")
    e("s_load_dwordx4 s[32:35], s[8:9], 16")
    e("s_load_dwordx4 s[36:39], s[8:9], 32")
    e("s_load_dwordx2 s[24:25], s[0:1], 96")
    if STAMP:
        e("s_load_dwordx2 s[92:93], s[0:1], 112")
        e("s_mov_b32 s94, 0x1000000")
        e("s_mov_b32 s95, 0x20000")
        e("s_lshl_b32 s96, s2, 4")
        e("s_add_u32 s96, s96, s3")
        e("s_lshl_b32 s96, s96, 6")
        e("v_mov_b32 v127, 0")
    e("s_and_b32 s7, s4, 3")
    e("s_mul_i32 s7, s7, 160")
    e("s_lshl_b32 s10, s5, 3")
    e("s_lshl_b32 s11, s5, 4")
    e("s_sub_u32 s11, s11, 320")
    e("s_cmp_ge_u32 s5, 20")
    e("s_cselect_b32 s10, s11, s10")
    e("s_cselect_b32 s89, 1, 0")
    e("s_add_u32 s10, s10, s7")
    if args.pwg:
        e("s_cmp_ge_u32 s5, 30")
        e("s_cbranch_scc1 L_pf")
    e("v_lshlrev_b32 v1, 2, v0")
    e("v_and_b32 v1, 124, v1")
    e("v_add_u32 v1, %d, v1" % CTL)
    e("v_mov_b32 v2, 0")
    e("ds_write_b32 v1, v2")
    e("s_cmp_ge_u32 s3, 8")
    e("s_cbranch_scc1 L_mfma")

    VL = 1
    VO = 2
    VXL = 3
    VYL = 4
    VA_ = 5; VB_ = 6; VC_ = 7; VD_ = 8
    WP = 10
    W = 18
    K = 34
    V = 48
    T = 56
    XP = 86
    Q = 94
    QF = 102
    e("s_setprio 3")
    e("s_cmp_lg_u32 s89, 0")
    e("s_cselect_b32 s40, 2, 1")
    sel(41, 64, 128)
    sel(42, 0x000F000F, 0x00030003)
    e("s_mov_b32 s43, s42")
    sel(49, XCP_H, XCP_M)
    sel(50, XB + X0OFF + XCP_H + 2040, XB + X0OFF + XCP_M + 4088)
    e("s_cselect_b32 s44, 1, 2")
    e("s_cselect_b32 s45, 3, 1")
    e("v_lshrrev_b32 v%d, s40, v0" % VA_)
    e("v_and_b32 v%d, s45, v0" % VB_)
    e("v_mul_u32_u24 v%d, 5120, v%d" % (VL, VA_))
    e("v_lshlrev_b32 v%d, 3, v%d" % (VC_, VB_))
    e("s_lshl_b32 s7, s10, 1")
    e("v_add3_u32 v%d, v%d, v%d, s7" % (VL, VL, VC_))
    e("v_lshlrev_b32 v%d, 5, v%d" % (VD_, VB_))
    e("s_lshl_b32 s7, s10, 3")
    e("v_add_u32 v%d, s7, v%d" % (VD_, VD_))
    e("s_waitcnt lgkmcnt(0)")
    stamp(0)
    srd(12, 30, 2621440); srd(16, 32, 2621440); srd(20, 28, 2621440); srd(52, 34, 5120)
    if not args.kvfirst:
        e("s_barrier")
    def pf_code(nthreads_shift_desc):
        pass
    if args.hpf:
        e("s_cmp_eq_u32 s89, 0")
        e("s_cbranch_scc1 L_nohpf")
        e("s_mul_i32 s7, s3, 640")
        e("s_lshl_b32 s11, s5, 6")
        e("s_add_u32 s7, s7, s11")
        e("s_sub_u32 s7, s7, 1280")
        e("v_add_u32 v%d, s7, v0" % T)
        e("s_and_b32 s7, s4, 3")
        e("s_mul_i32 s7, s7, 320")
        e("s_and_b32 s11, s7, 0xffffff80")
        e("s_mov_b32 s7, 0xAAAB")
        for it in range(2):
            if it: e("v_add_u32 v%d, 5120, v%d" % (T, T))
            e("v_mul_u32_u24 v%d, s7, v%d" % (T + 1, T))
            e("v_lshrrev_b32 v%d, 17, v%d" % (T + 1, T + 1))
            e("v_mul_u32_u24 v%d, 3, v%d" % (T + 2, T + 1))
            e("v_sub_u32 v%d, v%d, v%d" % (T + 2, T, T + 2))
            e("v_mul_u32_u24 v%d, 1280, v%d" % (T + 1, T + 1))
            e("v_lshlrev_b32 v%d, 7, v%d" % (T + 2, T + 2))
            e("v_add3_u32 v%d, v%d, v%d, s11" % (T + 3 + it, T + 1, T + 2))
        e("buffer_load_dword v%d, v%d, s[12:15], 0 offen" % (T + 6, T + 3))
        e("buffer_load_dword v%d, v%d, s[16:19], 0 offen" % (T + 7, T + 3))
        e("s_barrier") if False else None
        e("s_cmp_ge_u32 s3, 2")
        e("s_cbranch_scc1 L_nohpf")
        e("buffer_load_dword v%d, v%d, s[12:15], 0 offen" % (T + 8, T + 4))
        e("buffer_load_dword v%d, v%d, s[16:19], 0 offen" % (T + 9, T + 4))
        g.l("L_nohpf")
    e("buffer_load_dwordx4 %s, v%d, s[52:55], 0 offen" % (vr(WP, 4), VD_))
    e("buffer_load_dwordx4 %s, v%d, s[52:55], 0 offen offset:16" % (vr(WP + 4, 4), VD_))
    def issue_kv(chunk_sgpr):
        e("s_mul_i32 s7, s%d, s41" % chunk_sgpr)
        e("s_mul_i32 s7, s7, 1280")
        e("v_add_u32 v%d, s7, v%d" % (VC_, VL))
        e("v_subrev_u32 v%d, 3840, v%d" % (VD_, VC_))
        for r in range(4):
            e("buffer_load_dwordx2 %s, v%d, s[12:15], 0 offen offset:%d" % (vr(K + 6 + 2 * r, 2), VC_, 1280 * r))
            e("buffer_load_dwordx2 %s, v%d, s[16:19], 0 offen offset:%d" % (vr(V + 2 * r, 2), VC_, 1280 * r))
        e("s_mov_b64 exec, s[42:43]")
        for r in range(3):
            e("buffer_load_dwordx2 %s, v%d, s[12:15], 0 offen offset:%d" % (vr(K + 2 * r, 2), VD_, 1280 * r))
        e("s_mov_b64 exec, -1")
    e("s_mov_b32 s46, s3")
    issue_kv(46)
    if args.kvfirst:
        e("s_barrier")
    stamp(1)
    srd(24, 24, 5242880)
    e("v_mul_u32_u24 v%d, 10240, v%d" % (VO, VA_))
    e("s_mul_i32 s7, s6, 1280")
    e("s_lshl_b32 s11, s10, 1")
    e("s_add_u32 s7, s7, s11")
    e("v_lshlrev_b32 v%d, 3, v%d" % (T, VB_))
    e("v_add3_u32 v%d, v%d, v%d, s7" % (VO, VO, T))
    e("v_and_b32 v%d, 1, v%d" % (T, VB_))
    e("v_mul_u32_u24 v%d, %d, v%d" % (T, XG, T))
    e("v_lshrrev_b32 v%d, 1, v%d" % (T + 1, VB_))
    e("v_mul_u32_u24 v%d, %d, v%d" % (T + 1, XHALF, T + 1))
    e("v_add_u32 v%d, v%d, v%d" % (T, T, T + 1))
    e("v_lshlrev_b32 v%d, 3, v%d" % (T + 1, VA_))
    e("v_sub_u32 v%d, v%d, v%d" % (VXL, T, T + 1))
    e("v_add_u32 v%d, s50, v%d" % (VXL, VXL))
    e("v_lshlrev_b32 v%d, 4, v%d" % (T + 1, VA_))
    e("v_add_u32 v%d, v%d, v%d" % (VYL, T, T + 1))
    e("v_add_u32 v%d, %d, v%d" % (VYL, XB + X0OFF + 64, VYL))
    e("s_mov_b32 s48, 0xffff0000")
    e("s_waitcnt vmcnt(11)")
    for i in range(4):
        e("v_lshlrev_b32 v%d, 16, v%d" % (W + 4 * i + 0, WP + 2 * i))
        e("v_and_b32 v%d, s48, v%d" % (W + 4 * i + 1, WP + 2 * i))
        e("v_lshlrev_b32 v%d, 16, v%d" % (W + 4 * i + 2, WP + 2 * i + 1))
        e("v_and_b32 v%d, s48, v%d" % (W + 4 * i + 3, WP + 2 * i + 1))
    e("s_mov_b32 s47, 0")
    g.l("L_xjob")
    e("s_mul_i32 s7, s46, s41")
    e("s_lshl_b32 s11, s7, 1")
    e("v_subrev_u32 v%d, s11, v%d" % (VA_, VXL))
    e("v_subrev_u32 v%d, s49, v%d" % (VB_, VA_))
    e("v_subrev_u32 v%d, 4, v%d" % (9, VB_))
    e("s_lshr_b32 s7, s7, 8")
    e("s_lshl_b32 s7, s7, 2")
    e("s_add_u32 s51, s7, %d" % CTL)
    e("s_waitcnt vmcnt(0)")
    if STAMP == 1 or STAMP == 3:
        e("s_lshl_b32 s97, s47, 1"); e("s_add_u32 s97, s97, 2"); stamp("s97")
    e("s_cmp_lg_u32 s89, 0")
    e("s_cbranch_scc1 L_dpp_h")
    for r in range(3):
        for d in range(2):
            e("v_mov_b32_dpp v%d, v%d row_shr:2 row_mask:0xf bank_mask:0xf" % (K + 2 * r + d, K + 2 * (r + 4) + d))
    e("s_branch L_dpp_done")
    g.l("L_dpp_h")
    for r in range(3):
        for d in range(2):
            e("v_mov_b32_dpp v%d, v%d row_shr:4 row_mask:0xf bank_mask:0xf" % (K + 2 * r + d, K + 2 * (r + 4) + d))
    g.l("L_dpp_done")
    for d in range(2):
        for r in (3, 4, 5, 6, 0, 1, 2):
            e("v_lshlrev_b32 v%d, 16, v%d" % (T + r, K + 2 * r + d))
            e("v_and_b32 v%d, s48, v%d" % (T + 7 + r, K + 2 * r + d))
        A = T + 14; U = T + 22
        for h in range(2):
            c = 2 * d + h
            for row in range(4):
                e("v_mul_f32 v%d, v%d, v%d" % (A + h * 4 + row, W + 4 * c + 3, T + 7 * h + row))
            for j in (2, 1, 0):
                for row in range(4):
                    e("v_fmac_f32 v%d, v%d, v%d" % (A + h * 4 + row, W + 4 * c + j, T + 7 * h + row + 3 - j))
        for row in range(4):
            e("v_lshlrev_b32 v%d, 16, v%d" % (U + row, V + 2 * row + d))
            e("v_and_b32 v%d, s48, v%d" % (U + 4 + row, V + 2 * row + d))
        for i in range(8):
            e("v_mul_f32 v%d, v%d, v%d" % (A + i, A + i, U + i))
        for h in range(2):
            c = 2 * d + h
            e("v_cvt_pk_bf16_f32 v%d, v%d, v%d" % (XP + 2 * c, A + h * 4 + 3, A + h * 4 + 2))
            e("v_cvt_pk_bf16_f32 v%d, v%d, v%d" % (XP + 2 * c + 1, A + h * 4 + 1, A + h * 4 + 0))
        for h in range(2):
            c = 2 * d + h
            e("ds_write_b64 v%d, %s offset:%d" % (VA_, vr(XP + 2 * c, 2), c * XCH))
        c = 2 * d
        e("ds_write2st64_b32 v9, v%d, v%d offset0:%d offset1:%d" % (XP + 2 * c, XP + 2 * c + 2, 35 * c, 35 * (c + 1)))
        e("ds_write2st64_b32 v%d, v%d, v%d offset0:%d offset1:%d" % (VB_, XP + 2 * c + 1, XP + 2 * c + 3, 35 * c, 35 * (c + 1)))
    e("v_mov_b32 v%d, s51" % T)
    e("v_mov_b32 v%d, s44" % (T + 1))
    e("s_waitcnt lgkmcnt(0)")
    e("s_mov_b64 exec, 1")
    e("ds_add_u32 v%d, v%d" % (T, T + 1))
    e("s_mov_b64 exec, -1")
    if STAMP == 1 or STAMP == 3:
        e("s_add_u32 s97, s97, 1"); stamp("s97")
    e("s_cmp_lg_u32 s47, 0")
    e("s_cbranch_scc1 L_xdone")
    e("s_mov_b32 s47, 1")
    e("s_setprio 2")
    e("s_add_u32 s46, s46, 8")
    issue_kv(46)
    e("s_branch L_xjob")
    g.l("L_xdone")
    e("s_setprio 1")
    e("s_add_u32 s7, s3, 8")
    e("s_cmp_lg_u32 s89, 0")
    e("s_cselect_b32 s46, s3, s7")
    g.l("L_ejob")
    e("s_mul_i32 s56, s46, s41")
    e("s_mul_i32 s7, s56, 1280")
    e("v_add_u32 v%d, s7, v%d" % (VC_, VL))
    for r in range(4):
        e("buffer_load_dwordx2 %s, v%d, s[20:23], 0 offen offset:%d" % (vr(Q + 2 * r, 2), VC_, 1280 * r))
    e("s_mul_i32 s7, s56, 2560")
    e("v_add_u32 v%d, s7, v%d" % (VC_, VO))
    e("v_add_u32 v%d, 5120, v%d" % (VD_, VC_))
    e("s_and_b32 s7, s56, 255")
    e("s_lshl_b32 s7, s7, 2")
    e("s_bitcmp1_b32 s56, 8")
    e("s_cselect_b32 s11, s49, 0")
    e("s_add_u32 s7, s7, s11")
    e("s_bitcmp1_b32 s56, 9")
    e("s_cselect_b32 s11, 0, 1024")
    e("s_add_u32 s7, s7, s11")
    e("v_add_u32 v%d, s7, v%d" % (VA_, VYL))
    e("s_lshr_b32 s7, s56, 9")
    e("s_lshl_b32 s7, s7, 2")
    e("s_add_u32 s7, s7, %d" % (CTL + 32))
    e("v_mov_b32 v%d, s7" % VB_)
    e("s_waitcnt vmcnt(0)")
    if STAMP == 1 or STAMP == 3:
        e("s_add_u32 s97, s97, 1"); stamp("s97")
    for row in range(4):
        for d in range(2):
            e("v_lshlrev_b32 v%d, 16, v%d" % (QF + 4 * (2 * d) + row, Q + 2 * row + d))
            e("v_and_b32 v%d, s48, v%d" % (QF + 4 * (2 * d + 1) + row, Q + 2 * row + d))
    lp = g.newlab("L_ywait")
    g.l(lp)
    e("ds_read_b32 v%d, v%d" % (T, VB_))
    e("s_waitcnt lgkmcnt(0)")
    e("v_readfirstlane_b32 s7, v%d" % T)
    e("s_cmp_ge_u32 s7, 8")
    e("s_cbranch_scc1 %s_done" % lp)
    e("s_sleep 1")
    e("s_branch %s" % lp)
    g.l(lp + "_done")
    if STAMP == 1 or STAMP == 3:
        e("s_add_u32 s97, s97, 1"); stamp("s97")
    Y = T
    O = T + 16
    for c in range(4):
        e("ds_read_b128 %s, v%d offset:%d" % (vr(Y + 4 * c, 4), VA_, c * XCH))
    for d in range(2):
        e("s_waitcnt lgkmcnt(%d)" % (2 - 2 * d))
        for i in range(8):
            e("v_mul_f32 v%d, v%d, v%d" % (Y + 8 * d + i, Y + 8 * d + i, QF + 8 * d + i))
        for row in range(4):
            e("v_cvt_pk_bf16_f32 v%d, v%d, v%d" % (O + 2 * row + d, Y + 8 * d + row, Y + 8 * d + 4 + row))
    e("buffer_store_dwordx2 %s, v%d, s[24:27], 0 offen" % (vr(O, 2), VC_))
    e("buffer_store_dwordx2 %s, v%d, s[24:27], 0 offen offset:2560" % (vr(O + 2, 2), VC_))
    e("buffer_store_dwordx2 %s, v%d, s[24:27], 0 offen" % (vr(O + 4, 2), VD_))
    e("buffer_store_dwordx2 %s, v%d, s[24:27], 0 offen offset:2560" % (vr(O + 6, 2), VD_))
    e("s_cmp_ge_u32 s46, 8")
    e("s_cbranch_scc1 L_io_done")
    e("s_add_u32 s46, s46, 8")
    e("s_branch L_ejob")
    g.l("L_io_done")
    stamp_flush()
    e("s_endpgm")

    g.l("L_mfma")
    e("s_sub_u32 s3, s3, 8")
    e("s_add_u32 s7, s10, s3")
    e("s_lshl_b32 s11, s7, 12")
    e("s_lshr_b32 s44, s7, 1")
    e("s_lshl_b32 s44, s44, 2")
    e("s_and_b32 s45, s7, 1")
    e("v_lshlrev_b32 v1, 4, v0")
    e("v_subrev_u32 v2, 4, v1")
    e("s_cmp_lg_u32 s89, 0")
    e("s_cselect_b32 s7, 32768, 0")
    e("s_cselect_b32 s22, 0, 2048")
    sel(23, HCP_H, HCP_M)
    sel(49, XCP_H, XCP_M)
    sel(50, 2 * HCP_H, 2048)
    e("v_add_u32 v3, s22, v1")
    e("v_subrev_u32 v4, 4, v3")
    e("s_waitcnt lgkmcnt(0)")
    stamp(0)
    e("s_add_u32 s12, s36, s11")
    e("s_addc_u32 s13, s37, 0")
    e("s_and_b32 s13, s13, 0xffff")
    e("s_mov_b32 s14, 4096")
    e("s_mov_b32 s15, 0x20000")
    e("s_add_u32 s16, s12, s7")
    e("s_addc_u32 s17, s13, 0")
    e("s_mov_b32 s18, 4096")
    e("s_mov_b32 s19, 0x20000")
    e("s_add_u32 s38, s38, s44")
    e("s_addc_u32 s39, s39, 0")
    e("s_load_dword s40, s[38:39], 0")
    e("s_cmp_lg_u32 s89, 0")
    e("s_cselect_b32 s7, 16, 0")
    e("s_load_dword s41, s[38:39], s7")
    if args.kvfirst:
        e("s_barrier")
    HD = 48; HM = 64
    order = (2, 3, 1, 0) if args.horder else (0, 1, 2, 3)
    for b in order:
        S = "s[12:15]" if b < 2 else "s[16:19]"
        va, vb = ("v1", "v2") if b < 2 else ("v3", "v4")
        e("buffer_load_dwordx4 %s, %s, %s, 0 offen offset:%d%s" % (vr(HD + 4 * b, 4), va, S, 1024 * (b & 1), NH))
        if (b & 1) == 0:
            e("buffer_load_dword v%d, %s, %s, 0 offen%s" % (HM + b, vb, S, NH))
        else:
            e("buffer_load_dword v%d, %s, %s, 0 offen offset:1020%s" % (HM + b, va, S, NH))
    if not args.kvfirst:
        e("s_barrier")
    e("s_mul_i32 s20, s3, %d" % HSLOT)
    e("s_and_b32 s7, s3, 3")
    e("s_mul_i32 s21, s7, %d" % XCH)
    e("s_lshr_b32 s7, s3, 2")
    e("s_mul_i32 s7, s7, %d" % XG)
    e("s_add_u32 s21, s21, s7")
    e("s_add_u32 s21, s21, %d" % XB)
    for i in range(4):
        e("v_mov_b32 v%d, 0" % (4 + i))
    e("v_and_b32 v3, 31, v0")
    e("v_min_u32 v3, 27, v3")
    e("v_lshlrev_b32 v3, 4, v3")
    e("v_lshrrev_b32 v8, 5, v0")
    e("v_mul_u32_u24 v9, s23, v8")
    e("v_add3_u32 v3, v3, v9, s20")
    e("ds_write_b128 v3, v[4:7]")
    e("v_and_b32 v10, 31, v0")
    e("v_min_u32 v10, 16, v10")
    e("v_lshlrev_b32 v10, 2, v10")
    e("s_add_u32 s7, s49, 4")
    e("v_mul_u32_u24 v9, s7, v8")
    e("v_sub_u32 v10, v10, v9")
    e("s_lshl_b32 s7, s49, 1")
    e("s_add_u32 s7, s7, s21")
    e("s_add_u32 s7, s7, %d" % (X0OFF - 128))
    e("v_add_u32 v10, s7, v10")
    e("ds_write_b32 v10, v4")
    e("s_cmp_eq_u32 s89, 0")
    e("s_cbranch_scc1 L_nopad2")
    e("ds_write_b128 v3, v[4:7] offset:%d" % (2 * HCP_H))
    e("ds_write_b32 v10, v4 offset:%d" % XHALF)
    g.l("L_nopad2")
    VA = 1; VB = 2; VYW = 3
    e("v_add_u32 v40, s20, v1")
    e("v_add_u32 v46, s50, v40")
    e("v_add_u32 v47, s23, v40")
    e("v_add_u32 v76, s23, v46")
    e("v_and_b32 v41, 1, v0")
    e("v_xor_b32 v41, 1, v41")
    e("v_mul_u32_u24 v41, s23, v41")
    e("v_bfe_u32 v42, v0, 1, 3")
    e("v_lshlrev_b32 v42, 6, v42")
    e("v_lshrrev_b32 v43, 4, v0")
    e("v_lshlrev_b32 v44, 4, v43")
    e("v_add3_u32 v41, v41, v42, v44")
    e("v_add_u32 v%d, s20, v41" % VA)
    e("v_and_b32 v41, 1, v0")
    e("s_add_u32 s7, s49, 4")
    e("v_mul_u32_u24 v41, s7, v41")
    e("v_and_b32 v42, 15, v0")
    e("v_lshlrev_b32 v45, 2, v42")
    e("v_sub_u32 v41, v41, v45")
    e("v_add3_u32 v41, v41, v44, s21")
    e("v_add_u32 v%d, %d, v41" % (VB, X0OFF + 56))
    e("v_lshlrev_b32 v41, 8, v43")
    e("v_lshlrev_b32 v45, 3, v42")
    e("v_add3_u32 v41, v41, v45, s21")
    e("v_add_u32 v%d, %d, v41" % (VYW, X0OFF + 64))
    ACC = 8
    for i in range(32):
        e("v_mov_b32 v%d, 0" % (ACC + i))
    e("s_waitcnt lgkmcnt(0)")
    e("s_lshl_b32 s42, s40, 16")
    e("s_and_b32 s40, s40, 0xffff0000")
    e("s_lshl_b32 s43, s41, 16")
    e("s_and_b32 s41, s41, 0xffff0000")
    e("s_cmp_eq_u32 s45, 0")
    e("s_cselect_b32 s40, s42, s40")
    e("s_cselect_b32 s41, s43, s41")
    e("s_cmp_eq_u32 s89, 0")
    e("s_cselect_b32 s41, 0, s41")
    for n, b in enumerate(order):
        e("s_waitcnt vmcnt(%d)" % (6 - 2 * n))
        d = HD + 4 * b
        o = 68 + 4 * (n & 1)
        if b in (0, 2):
            e("s_mov_b64 exec, 1")
            e("v_lshlrev_b32 v77, 16, v%d" % d)
            e("v_and_b32 v78, 0xffff0000, v%d" % d)
            e("v_add_f32 v77, s%d, v77" % (40 + (b >> 1)))
            e("v_cvt_pk_bf16_f32 v%d, v77, v78" % d)
            e("s_mov_b64 exec, -1")
        e("ds_write_b128 %s, %s offset:%d" % ("v40" if b < 2 else "v46", vr(d, 4), 448 + 1024 * (b & 1)))
        e("v_alignbit_b32 v%d, v%d, v%d, 16" % (o + 0, d + 0, HM + b))
        e("v_alignbit_b32 v%d, v%d, v%d, 16" % (o + 1, d + 1, d + 0))
        e("v_alignbit_b32 v%d, v%d, v%d, 16" % (o + 2, d + 2, d + 1))
        e("v_alignbit_b32 v%d, v%d, v%d, 16" % (o + 3, d + 3, d + 2))
        e("ds_write_b128 %s, %s offset:%d" % ("v47" if b < 2 else "v76", vr(o, 4), 448 + 1024 * (b & 1)))
    e("v_mov_b32 v4, %d" % CTL)
    e("v_mov_b32 v5, 1")
    e("s_waitcnt lgkmcnt(0)")
    stamp(1)
    e("s_cmp_lg_u32 s89, 0")
    e("s_cbranch_scc1 L_mfma_h")

    def wait_flags(blocks):
        lp = g.newlab("L_xwait")
        g.l(lp)
        lo = blocks[0] & ~1
        n2 = (blocks[-1] - lo) // 2 + 1
        for i in range(n2):
            e("ds_read_b64 v[%d:%d], v4 offset:%d" % (120 + 2 * i, 121 + 2 * i, 4 * lo + 8 * i))
        e("s_waitcnt lgkmcnt(0)")
        r0 = 120 + blocks[0] - lo
        for b in blocks[1:]:
            e("v_and_b32 v%d, v%d, v%d" % (r0, r0, 120 + b - lo))
        e("s_nop 0")
        e("v_readfirstlane_b32 s7, v%d" % r0)
        e("s_bitcmp1_b32 s7, 2")
        e("s_cbranch_scc1 %s_done" % lp)
        e("s_sleep 1")
        e("s_branch %s" % lp)
        g.l(lp + "_done")

    def front(steps, setbase, nregs):
        setsize = 4 * max(len(st[0]) for st in steps)
        nsets = min(nregs // setsize, args.maxsets, len(steps) + 1)
        assert nsets >= 2
        LA = nsets - 1
        issued = []
        def regs(si, reads):
            m = {}; r = setbase + (si % nsets) * setsize
            for (key, kind, ar, off) in reads:
                m[key] = r; r += 4
            return m
        def rinstrs(si):
            reads = steps[si][0]; m = regs(si, reads); out = []
            for (key, kind, ar, off) in reads:
                if kind == 'A':
                    out.append(((si, key), "ds_read_b128 %s, v%d offset:%d" % (vr(m[key], 4), ar, off)))
                else:
                    out.append(((si, key), "ds_read_b64 %s, v%d offset:%d" % (vr(m[key], 2), ar, off)))
                    out.append(((si, key), "ds_read_b64 %s, v%d offset:%d" % (vr(m[key] + 2, 2), ar, off + 8)))
            return out
        done_upto = [0]
        def need(keys):
            last = max(i for i, k in enumerate(issued) if k in keys)
            if last < done_upto[0]: return
            n = min(len(issued) - 1 - last, 14)
            e("s_waitcnt lgkmcnt(%d)" % n)
            done_upto[0] = len(issued) - n
        for si in range(min(LA, len(steps))):
            for k, s_ in rinstrs(si):
                e(s_); issued.append(k)
        for si, (reads, mf) in enumerate(steps):
            m = regs(si, reads)
            nxt = rinstrs(si + LA) if si + LA < len(steps) else []
            nm = len(mf); pos = 0
            for i, (acc, ka, kb) in enumerate(mf):
                need({(si, ka), (si, kb)})
                e("v_mfma_f32_16x16x32_bf16 %s, %s, %s, %s" % (vr(acc, 4), vr(m[ka], 4), vr(m[kb], 4), vr(acc, 4)))
                tgt = min(len(nxt), (len(nxt) * (i + 1) + nm - 1) // nm)
                while pos < tgt:
                    k, s_ = nxt[pos]; e(s_); issued.append(k); pos += 1

    def mk_steps(qs, rlo, rhi, nblk, aoff, boff, accbase, tag):
        steps = []
        units = [(p, q) for q in qs for p in range(nblk) if rlo <= p + q <= rhi]
        units.sort(key=lambda u: (u[0], u[1]))
        for t in range(8):
            reads = []; seen = set()
            for (p, q) in units:
                for key in (('B', q, tag, t), ('A', p, tag, t)):
                    if key in seen: continue
                    seen.add(key)
                    if key[0] == 'A': reads.append((key, 'A', VA, aoff + 512 * p + 64 * t))
                    else: reads.append((key, 'B', VB, boff + 512 * (nblk - 1 - q) + 64 * t))
            mf = [(accbase + 4 * (p + q - rlo), ('A', p, tag, t), ('B', q, tag, t)) for (p, q) in units]
            steps.append((reads, mf))
        return steps
    def merge(steps, maxfr):
        out = []
        for s in steps:
            if out and len(out[-1][0]) + len(s[0]) <= maxfr:
                out[-1] = (out[-1][0] + s[0], out[-1][1] + s[1])
            else:
                out.append(s)
        return out

    def yout(accs, cnt_idx):
        e("s_nop 7")
        for (a, off) in accs:
            e("ds_write_b64 v%d, %s offset:%d" % (VYW, vr(a, 2), off))
            e("ds_write_b64 v%d, %s offset:%d" % (VYW, vr(a + 2, 2), off + 128))
        e("s_waitcnt lgkmcnt(0)")
        e("s_mov_b64 exec, 1")
        e("ds_add_u32 v4, v5 offset:%d" % (32 + 4 * cnt_idx))
        e("s_mov_b64 exec, -1")

    fronts = [[int(c) for c in f] for f in args.mfronts.split(",")]
    sl = 2
    for fi, f in enumerate(fronts):
        if args.mprio: e("s_setprio %d" % max(0, min(3, len(fronts) - 1 - fi)))
        wait_flags(f)
        stamp(sl); sl += 1
        front(mk_steps(f, 4, 7, 8, 0, 0, ACC, 0), 24, 96)
        if 5 in f:
            yout([(ACC, 1024), (ACC + 4, 1024 + XCP_M)], 2)
        if 7 in f:
            yout([(ACC + 8, 0), (ACC + 12, XCP_M)], 3)
        stamp(sl); sl += 1
    stamp_flush()
    e("s_endpgm")

    g.l("L_mfma_h")
    hfronts = [[int(c) for c in f] for f in args.hfronts.split(",")]
    sl = 2
    for fi, f in enumerate(hfronts):
        if args.mprio: e("s_setprio %d" % max(0, min(3, len(hfronts) - 1 - fi)))
        wait_flags(f)
        stamp(sl); sl += 1
        s0 = mk_steps(f, 0, 3, 4, 0, 0, ACC, 0)
        s1 = mk_steps(f, 0, 3, 4, 2 * HCP_H, XHALF, ACC + 16, 1)
        steps = []
        for a, b in zip(s0, s1): steps += [a, b]
        front(steps, 40, 80)
        if 1 in f:
            yout([(ACC, 1024), (ACC + 4, 1024 + XCP_H), (ACC + 16, XHALF + 1024), (ACC + 20, XHALF + 1024 + XCP_H)], 0)
        if 3 in f:
            yout([(ACC + 8, 0), (ACC + 12, XCP_H), (ACC + 24, XHALF), (ACC + 28, XHALF + XCP_H)], 1)
        stamp(sl); sl += 1
    stamp_flush()
    e("s_endpgm")

    if args.pwg:
        g.l("L_pf")
        e("s_waitcnt lgkmcnt(0)")
        srd(20, 28, 2621440)
        e("s_sub_u32 s7, s5, 30")
        e("s_lshl_b32 s11, s3, 1")
        e("s_add_u32 s7, s7, s11")
        e("s_lshl_b32 s7, s7, 6")
        e("v_add_u32 v1, s7, v0")
        e("s_and_b32 s7, s4, 3")
        e("s_mul_i32 s7, s7, 320")
        e("s_and_b32 s11, s7, 0xffffff80")
        e("s_mov_b32 s7, 0xAAAB")
        for it in range(3):
            e("v_add_u32 v2, %d, v1" % (it * 2048))
            e("v_mul_u32_u24 v3, s7, v2")
            e("v_lshrrev_b32 v3, 17, v3")
            e("v_mul_u32_u24 v4, 3, v3")
            e("v_sub_u32 v4, v2, v4")
            e("v_mul_u32_u24 v3, 1280, v3")
            e("v_lshlrev_b32 v4, 7, v4")
            e("v_add3_u32 v%d, v3, v4, s11" % (8 + it))
        for it in range(3):
            e("buffer_load_dword v%d, v%d, s[20:23], 0 offen" % (22 + 3 * it, 8 + it))
            e("s_barrier")
        e("s_waitcnt vmcnt(0)")
    g.l("L_end")
    e("s_endpgm")

    out = HEADER
    out += "; @launch grid=(%d,1,1) block=(1024,1,1) lds=%d\n" % (NWG, LDS_BYTES)
    out += '.amdgcn_target "amdgcn-amd-amdhsa--gfx950"\n.text\n.globl %s_kernel\n.p2align 8\n.type %s_kernel,@function\n' % (NAME, NAME)
    out += "\n".join(g.lines) + "\n"
    out += '''.section .rodata,"a"
.p2align 6
.amdhsa_kernel %s_kernel
  .amdhsa_next_free_vgpr 128
  .amdhsa_next_free_sgpr 102
  .amdhsa_accum_offset 128
  .amdhsa_group_segment_fixed_size 0
  .amdhsa_kernarg_size 120
  .amdhsa_user_sgpr_count 2
  .amdhsa_user_sgpr_kernarg_segment_ptr 1
  .amdhsa_system_sgpr_workgroup_id_x 1
  .amdhsa_float_denorm_mode_32 3
.end_amdhsa_kernel
''' % NAME
    return out

if __name__ == "__main__":
    ap = argparse.ArgumentParser()
    ap.add_argument("-o", default="cdna_kernels/%s.s" % NAME)
    ap.add_argument("--pwg", type=int, default=0)
    ap.add_argument("--hpf", type=int, default=0)
    ap.add_argument("--kvfirst", type=int, default=0)
    ap.add_argument("--stamp", type=int, default=0)
    ap.add_argument("--nth", type=int, default=0)
    ap.add_argument("--horder", type=int, default=0)
    ap.add_argument("--maxsets", type=int, default=3)
    ap.add_argument("--mprio", type=int, default=1)
    ap.add_argument("--mfronts", default="01,23,45,67")
    ap.add_argument("--hfronts", default="01,23")
    a = ap.parse_args()
    open(a.o, "w").write(build(a))
    print("wrote", a.o, "LDS", LDS_BYTES)
```

```python
import sys, argparse

NAME = "concat_heads__ssm_conv_h3__ssm_conv_h3__prompt"
HEADER = open("cdna_kernels/%s.s.ref" % NAME).read().split("; Override launch geometry")[0]

HCP_M = 4576; HCP_H = 2528
HSLOT = 4 * HCP_H
XB = 8 * HSLOT
XCH = 8960
XG = 4 * XCH + 64
XHALF = 4384
XCP_M = 4224; XCP_H = 2176
X0OFF = 16
CTL = XB + 8 * XCH + 128
LDS_BYTES = CTL + 128

class Gen:
    def __init__(self):
        self.lines = []; self.lab = 0
    def e(self, s): self.lines.append("    " + s)
    def l(self, s): self.lines.append(s + ":")
    def newlab(self, p="L"):
        self.lab += 1
        return "%s_%d" % (p, self.lab)

def vr(b, n=1):
    return "v%d" % b if n == 1 else "v[%d:%d]" % (b, b + n - 1)

def build(args):
    g = Gen(); e = g.e
    STAMP = args.stamp
    NH = " nt" if args.nth else ""
    def stamp(slot):
        if not STAMP: return
        if STAMP == 2 and slot != 0: return
        e("s_memtime s[90:91]" if STAMP == 3 else "s_memrealtime s[90:91]")
        e("s_waitcnt lgkmcnt(0)")
        if isinstance(slot, str):
            e("s_mov_b32 m0, %s" % slot); e("s_nop 0")
            e("v_writelane_b32 v127, s90, m0")
        else:
            e("v_writelane_b32 v127, s90, %s" % slot)
    def stamp_flush():
        if not STAMP: return
        e("s_waitcnt vmcnt(0)")
        e("s_memtime s[90:91]" if STAMP == 3 else "s_memrealtime s[90:91]")
        e("s_waitcnt lgkmcnt(0)")
        e("v_writelane_b32 v127, s90, 15")
        e("v_lshlrev_b32 v126, 2, v0")
        e("v_add_u32 v126, s96, v126")
        e("s_mov_b64 exec, 0xffff")
        e("buffer_store_dword v127, v126, s[92:95], 0 offen")
    def srd(d, p, n):
        if d != p: e("s_mov_b32 s%d, s%d" % (d, p))
        e("s_and_b32 s%d, s%d, 0xffff" % (d + 1, p + 1))
        e("s_mov_b32 s%d, %d" % (d + 2, n))
        e("s_mov_b32 s%d, 0x20000" % (d + 3))
    def sel(d, a, b):
        e("s_mov_b32 s%d, %d" % (d, b))
        e("s_cmov_b32 s%d, %d" % (d, a))

    def pf_addr(dst, t1, t2, sidx, rowbase_rows):
        e("s_lshl_b32 s7, s%d, 6" % sidx)
        e("v_add_u32 v%d, s7, v0" % dst)
        e("s_mov_b32 s7, 0xAAAB")
        e("v_mul_u32_u24 v%d, s7, v%d" % (t1, dst))
        e("v_lshrrev_b32 v%d, 17, v%d" % (t1, t1))
        e("v_mul_u32_u24 v%d, 3, v%d" % (t2, t1))
        e("v_sub_u32 v%d, v%d, v%d" % (t2, dst, t2))
        e("v_mul_u32_u24 v%d, 1280, v%d" % (t1, t1))
        e("v_lshlrev_b32 v%d, 7, v%d" % (t2, t2))
        e("s_add_u32 s7, s88, %d" % (rowbase_rows * 1280))
        e("v_add3_u32 v%d, v%d, v%d, s7" % (dst, t1, t2))
    NWG = 256 if args.pwg else 240
    g.l(NAME + "_kernel")
    e("s_cmp_ge_u32 s2, %d" % NWG)
    e("s_cbranch_scc1 L_end")
    e("v_lshrrev_b32 v1, 6, v0")
    e("s_and_b32 s4, s2, 7")
    e("s_lshr_b32 s5, s2, 3")
    e("v_readfirstlane_b32 s3, v1")
    e("v_and_b32 v0, 63, v0")
    e("s_lshr_b32 s6, s4, 2")
    e("s_mul_i32 s7, s6, 48")
    e("s_add_u32 s8, s0, s7")
    e("s_addc_u32 s9, s1, 0")
    e("s_load_dwordx4 s[28:31], s[8:9], 0")
    e("s_load_dwordx4 s[32:35], s[8:9], 16")
    e("s_load_dwordx4 s[36:39], s[8:9], 32")
    e("s_load_dwordx2 s[24:25], s[0:1], 96")
    if STAMP:
        e("s_load_dwordx2 s[92:93], s[0:1], 112")
        e("s_mov_b32 s94, 0x1000000")
        e("s_mov_b32 s95, 0x20000")
        e("s_lshl_b32 s96, s2, 4")
        e("s_add_u32 s96, s96, s3")
        e("s_lshl_b32 s96, s96, 6")
        e("v_mov_b32 v127, 0")
    e("s_and_b32 s7, s4, 3")
    e("s_mul_i32 s7, s7, 160")
    e("s_lshl_b32 s10, s5, 3")
    e("s_lshl_b32 s11, s5, 4")
    e("s_sub_u32 s11, s11, 320")
    e("s_cmp_ge_u32 s5, 20")
    e("s_cselect_b32 s10, s11, s10")
    e("s_cselect_b32 s89, 1, 0")
    e("s_add_u32 s10, s10, s7")
    e("s_lshl_b32 s88, s7, 1")
    e("s_and_b32 s88, s88, 0xffffff80")
    if args.pwg:
        e("s_cmp_ge_u32 s5, 30")
        e("s_cbranch_scc1 L_pf")
    e("v_lshlrev_b32 v1, 2, v0")
    e("v_and_b32 v1, 124, v1")
    e("v_add_u32 v1, %d, v1" % CTL)
    e("v_mov_b32 v2, 0")
    e("ds_write_b32 v1, v2")
    e("s_cmp_ge_u32 s3, 8")
    e("s_cbranch_scc1 L_mfma")

    VL = 1
    VO = 2
    VXL = 3
    VYL = 4
    VA_ = 5; VB_ = 6; VC_ = 7; VD_ = 8
    WP = 10
    W = 18
    K = 34
    V = 48
    T = 56
    XP = 86
    Q = 94
    QF = 102
    e("s_setprio 3")
    e("s_cmp_lg_u32 s89, 0")
    e("s_cselect_b32 s40, 2, 1")
    sel(41, 64, 128)
    sel(42, 0x000F000F, 0x00030003)
    e("s_mov_b32 s43, s42")
    sel(49, XCP_H, XCP_M)
    sel(50, XB + X0OFF + XCP_H + 2040, XB + X0OFF + XCP_M + 4088)
    e("s_cselect_b32 s44, 1, 2")
    e("s_cselect_b32 s45, 3, 1")
    e("v_lshrrev_b32 v%d, s40, v0" % VA_)
    e("v_and_b32 v%d, s45, v0" % VB_)
    e("v_mul_u32_u24 v%d, 5120, v%d" % (VL, VA_))
    e("v_lshlrev_b32 v%d, 3, v%d" % (VC_, VB_))
    e("s_lshl_b32 s7, s10, 1")
    e("v_add3_u32 v%d, v%d, v%d, s7" % (VL, VL, VC_))
    e("v_lshlrev_b32 v%d, 5, v%d" % (VD_, VB_))
    e("s_lshl_b32 s7, s10, 3")
    e("v_add_u32 v%d, s7, v%d" % (VD_, VD_))
    e("s_waitcnt lgkmcnt(0)")
    stamp(0)
    srd(12, 30, 2621440); srd(16, 32, 2621440); srd(20, 28, 2621440); srd(52, 34, 5120)
    if not args.kvfirst:
        e("s_barrier")
    e("buffer_load_dwordx4 %s, v%d, s[52:55], 0 offen" % (vr(WP, 4), VD_))
    e("buffer_load_dwordx4 %s, v%d, s[52:55], 0 offen offset:16" % (vr(WP + 4, 4), VD_))
    def issue_kv(chunk_sgpr):
        e("s_mul_i32 s7, s%d, s41" % chunk_sgpr)
        e("s_mul_i32 s7, s7, 1280")
        e("v_add_u32 v%d, s7, v%d" % (VC_, VL))
        e("v_subrev_u32 v%d, 3840, v%d" % (VD_, VC_))
        for r in range(4):
            e("buffer_load_dwordx2 %s, v%d, s[12:15], 0 offen offset:%d" % (vr(K + 6 + 2 * r, 2), VC_, 1280 * r))
            e("buffer_load_dwordx2 %s, v%d, s[16:19], 0 offen offset:%d" % (vr(V + 2 * r, 2), VC_, 1280 * r))
        e("s_mov_b64 exec, s[42:43]")
        for r in range(3):
            e("buffer_load_dwordx2 %s, v%d, s[12:15], 0 offen offset:%d" % (vr(K + 2 * r, 2), VD_, 1280 * r))
        e("s_mov_b64 exec, -1")
    e("s_mov_b32 s46, s3")
    issue_kv(46)
    if args.kvfirst:
        e("s_barrier")
    stamp(1)
    srd(24, 24, 5242880)
    e("v_mul_u32_u24 v%d, 10240, v%d" % (VO, VA_))
    e("s_mul_i32 s7, s6, 1280")
    e("s_lshl_b32 s11, s10, 1")
    e("s_add_u32 s7, s7, s11")
    e("v_lshlrev_b32 v%d, 3, v%d" % (T, VB_))
    e("v_add3_u32 v%d, v%d, v%d, s7" % (VO, VO, T))
    e("v_and_b32 v%d, 1, v%d" % (T, VB_))
    e("v_mul_u32_u24 v%d, %d, v%d" % (T, XG, T))
    e("v_lshrrev_b32 v%d, 1, v%d" % (T + 1, VB_))
    e("v_mul_u32_u24 v%d, %d, v%d" % (T + 1, XHALF, T + 1))
    e("v_add_u32 v%d, v%d, v%d" % (T, T, T + 1))
    e("v_lshlrev_b32 v%d, 3, v%d" % (T + 1, VA_))
    e("v_sub_u32 v%d, v%d, v%d" % (VXL, T, T + 1))
    e("v_add_u32 v%d, s50, v%d" % (VXL, VXL))
    e("v_lshlrev_b32 v%d, 4, v%d" % (T + 1, VA_))
    e("v_add_u32 v%d, v%d, v%d" % (VYL, T, T + 1))
    e("v_add_u32 v%d, %d, v%d" % (VYL, XB + X0OFF + 64, VYL))
    e("s_mov_b32 s48, 0xffff0000")
    e("s_waitcnt vmcnt(11)")
    for i in range(4):
        e("v_lshlrev_b32 v%d, 16, v%d" % (W + 4 * i + 0, WP + 2 * i))
        e("v_and_b32 v%d, s48, v%d" % (W + 4 * i + 1, WP + 2 * i))
        e("v_lshlrev_b32 v%d, 16, v%d" % (W + 4 * i + 2, WP + 2 * i + 1))
        e("v_and_b32 v%d, s48, v%d" % (W + 4 * i + 3, WP + 2 * i + 1))
    e("s_mov_b32 s47, 0")
    g.l("L_xjob")
    e("s_mul_i32 s7, s46, s41")
    e("s_lshl_b32 s11, s7, 1")
    e("v_subrev_u32 v%d, s11, v%d" % (VA_, VXL))
    e("v_subrev_u32 v%d, s49, v%d" % (VB_, VA_))
    e("v_subrev_u32 v%d, 4, v%d" % (9, VB_))
    e("s_lshr_b32 s7, s7, 8")
    e("s_lshl_b32 s7, s7, 2")
    e("s_add_u32 s51, s7, %d" % CTL)
    if args.hpf:
        e("s_waitcnt vmcnt(3)")
        e("s_cmp_eq_u32 s47, 2")
        e("s_cbranch_scc1 L_w1")
    e("s_waitcnt vmcnt(0)")
    g.l("L_w1")
    if STAMP == 1 or STAMP == 3:
        e("s_min_u32 s97, s47, 1"); e("s_lshl_b32 s97, s97, 1"); e("s_add_u32 s97, s97, 2"); stamp("s97")
    e("s_cmp_lg_u32 s89, 0")
    e("s_cbranch_scc1 L_dpp_h")
    for r in range(3):
        for d in range(2):
            e("v_mov_b32_dpp v%d, v%d row_shr:2 row_mask:0xf bank_mask:0xf" % (K + 2 * r + d, K + 2 * (r + 4) + d))
    e("s_branch L_dpp_done")
    g.l("L_dpp_h")
    for r in range(3):
        for d in range(2):
            e("v_mov_b32_dpp v%d, v%d row_shr:4 row_mask:0xf bank_mask:0xf" % (K + 2 * r + d, K + 2 * (r + 4) + d))
    g.l("L_dpp_done")
    for d in range(2):
        for r in (3, 4, 5, 6, 0, 1, 2):
            e("v_lshlrev_b32 v%d, 16, v%d" % (T + r, K + 2 * r + d))
            e("v_and_b32 v%d, s48, v%d" % (T + 7 + r, K + 2 * r + d))
        A = T + 14; U = T + 22
        for h in range(2):
            c = 2 * d + h
            for row in range(4):
                e("v_mul_f32 v%d, v%d, v%d" % (A + h * 4 + row, W + 4 * c + 3, T + 7 * h + row))
            for j in (2, 1, 0):
                for row in range(4):
                    e("v_fmac_f32 v%d, v%d, v%d" % (A + h * 4 + row, W + 4 * c + j, T + 7 * h + row + 3 - j))
        for row in range(4):
            e("v_lshlrev_b32 v%d, 16, v%d" % (U + row, V + 2 * row + d))
            e("v_and_b32 v%d, s48, v%d" % (U + 4 + row, V + 2 * row + d))
        for i in range(8):
            e("v_mul_f32 v%d, v%d, v%d" % (A + i, A + i, U + i))
        for h in range(2):
            c = 2 * d + h
            e("v_cvt_pk_bf16_f32 v%d, v%d, v%d" % (XP + 2 * c, A + h * 4 + 3, A + h * 4 + 2))
            e("v_cvt_pk_bf16_f32 v%d, v%d, v%d" % (XP + 2 * c + 1, A + h * 4 + 1, A + h * 4 + 0))
        for h in range(2):
            c = 2 * d + h
            e("ds_write_b64 v%d, %s offset:%d" % (VA_, vr(XP + 2 * c, 2), c * XCH))
        c = 2 * d
        e("ds_write2st64_b32 v9, v%d, v%d offset0:%d offset1:%d" % (XP + 2 * c, XP + 2 * c + 2, 35 * c, 35 * (c + 1)))
        e("ds_write2st64_b32 v%d, v%d, v%d offset0:%d offset1:%d" % (VB_, XP + 2 * c + 1, XP + 2 * c + 3, 35 * c, 35 * (c + 1)))
    e("v_mov_b32 v%d, s51" % T)
    e("v_mov_b32 v%d, s44" % (T + 1))
    e("s_waitcnt lgkmcnt(0)")
    e("s_mov_b64 exec, 1")
    e("ds_add_u32 v%d, v%d" % (T, T + 1))
    e("s_mov_b64 exec, -1")
    if STAMP == 1 or STAMP == 3:
        e("s_add_u32 s97, s97, 1"); stamp("s97")
    e("s_cmp_lg_u32 s47, 0")
    e("s_cbranch_scc1 L_xdone")
    e("s_mov_b32 s47, 1")
    e("s_setprio 2")
    e("s_add_u32 s46, s46, 8")
    issue_kv(46)
    if args.hpf:
        e("s_cmp_eq_u32 s89, 0")
        e("s_cbranch_scc1 L_xjob")
        e("s_cmp_lt_u32 s3, 4")
        e("s_cbranch_scc1 L_xjob")
        e("s_mul_i32 s56, s3, 10")
        e("s_add_u32 s56, s56, s5")
        e("s_sub_u32 s56, s56, 60")
        e("s_mov_b32 s47, 2")
        e("s_cmp_ge_u32 s56, 24")
        e("s_cbranch_scc1 L_hpf_q")
        pf_addr(Q, Q + 1, Q + 2, 56, 1536)
        e("buffer_load_dword v%d, v%d, s[12:15], 0 offen" % (Q + 3, Q))
        e("buffer_load_dword v%d, v%d, s[16:19], 0 offen" % (Q + 4, Q))
        e("buffer_load_dword v%d, v%d, s[16:19], 0 offen" % (Q + 5, Q) if args.hpf == 1 else "s_nop 0")
        e("s_branch L_xjob")
        g.l("L_hpf_q")
        e("s_sub_u32 s56, s56, 24")
        pf_addr(Q, Q + 1, Q + 2, 56, 0)
        e("s_mov_b32 s7, %d" % (1024 // 3 * 1280))
        e("buffer_load_dword v%d, v%d, s[20:23], 0 offen" % (Q + 3, Q))
        e("buffer_load_dword v%d, v%d, s[20:23], s7 offen" % (Q + 4, Q))
        e("s_mov_b32 s7, %d" % (2048 // 3 * 1280))
        e("buffer_load_dword v%d, v%d, s[20:23], s7 offen" % (Q + 5, Q))
    e("s_branch L_xjob")
    g.l("L_xdone")
    e("s_setprio 1")
    e("s_add_u32 s7, s3, 8")
    e("s_cmp_lg_u32 s89, 0")
    e("s_cselect_b32 s46, s3, s7")
    g.l("L_ejob")
    e("s_mul_i32 s56, s46, s41")
    e("s_mul_i32 s7, s56, 1280")
    e("v_add_u32 v%d, s7, v%d" % (VC_, VL))
    for r in range(4):
        e("buffer_load_dwordx2 %s, v%d, s[20:23], 0 offen offset:%d" % (vr(Q + 2 * r, 2), VC_, 1280 * r))
    e("s_mul_i32 s7, s56, 2560")
    e("v_add_u32 v%d, s7, v%d" % (VC_, VO))
    e("v_add_u32 v%d, 5120, v%d" % (VD_, VC_))
    e("s_and_b32 s7, s56, 255")
    e("s_lshl_b32 s7, s7, 2")
    e("s_bitcmp1_b32 s56, 8")
    e("s_cselect_b32 s11, s49, 0")
    e("s_add_u32 s7, s7, s11")
    e("s_bitcmp1_b32 s56, 9")
    e("s_cselect_b32 s11, 0, 1024")
    e("s_add_u32 s7, s7, s11")
    e("v_add_u32 v%d, s7, v%d" % (VA_, VYL))
    e("s_lshr_b32 s7, s56, 9")
    e("s_lshl_b32 s7, s7, 2")
    e("s_add_u32 s7, s7, %d" % (CTL + 32))
    e("v_mov_b32 v%d, s7" % VB_)
    e("s_waitcnt vmcnt(0)")
    if STAMP == 1 or STAMP == 3:
        e("s_add_u32 s97, s97, 1"); stamp("s97")
    for row in range(4):
        for d in range(2):
            e("v_lshlrev_b32 v%d, 16, v%d" % (QF + 4 * (2 * d) + row, Q + 2 * row + d))
            e("v_and_b32 v%d, s48, v%d" % (QF + 4 * (2 * d + 1) + row, Q + 2 * row + d))
    lp = g.newlab("L_ywait")
    g.l(lp)
    e("ds_read_b32 v%d, v%d" % (T, VB_))
    e("s_waitcnt lgkmcnt(0)")
    e("v_readfirstlane_b32 s7, v%d" % T)
    e("s_cmp_ge_u32 s7, 8")
    e("s_cbranch_scc1 %s_done" % lp)
    e("s_sleep 1")
    e("s_branch %s" % lp)
    g.l(lp + "_done")
    if STAMP == 1 or STAMP == 3:
        e("s_add_u32 s97, s97, 1"); stamp("s97")
    Y = T
    O = T + 16
    for c in range(4):
        e("ds_read_b128 %s, v%d offset:%d" % (vr(Y + 4 * c, 4), VA_, c * XCH))
    for d in range(2):
        e("s_waitcnt lgkmcnt(%d)" % (2 - 2 * d))
        for i in range(8):
            e("v_mul_f32 v%d, v%d, v%d" % (Y + 8 * d + i, Y + 8 * d + i, QF + 8 * d + i))
        for row in range(4):
            e("v_cvt_pk_bf16_f32 v%d, v%d, v%d" % (O + 2 * row + d, Y + 8 * d + row, Y + 8 * d + 4 + row))
    e("buffer_store_dwordx2 %s, v%d, s[24:27], 0 offen" % (vr(O, 2), VC_))
    e("buffer_store_dwordx2 %s, v%d, s[24:27], 0 offen offset:2560" % (vr(O + 2, 2), VC_))
    e("buffer_store_dwordx2 %s, v%d, s[24:27], 0 offen" % (vr(O + 4, 2), VD_))
    e("buffer_store_dwordx2 %s, v%d, s[24:27], 0 offen offset:2560" % (vr(O + 6, 2), VD_))
    e("s_cmp_ge_u32 s46, 8")
    e("s_cbranch_scc1 L_io_done")
    e("s_add_u32 s46, s46, 8")
    e("s_branch L_ejob")
    g.l("L_io_done")
    stamp_flush()
    e("s_endpgm")

    g.l("L_mfma")
    e("s_sub_u32 s3, s3, 8")
    e("s_add_u32 s7, s10, s3")
    e("s_lshl_b32 s11, s7, 12")
    e("s_lshr_b32 s44, s7, 1")
    e("s_lshl_b32 s44, s44, 2")
    e("s_and_b32 s45, s7, 1")
    e("v_lshlrev_b32 v1, 4, v0")
    e("v_subrev_u32 v2, 4, v1")
    e("s_cmp_lg_u32 s89, 0")
    e("s_cselect_b32 s7, 32768, 0")
    e("s_cselect_b32 s22, 0, 2048")
    sel(23, HCP_H, HCP_M)
    sel(49, XCP_H, XCP_M)
    sel(50, 2 * HCP_H, 2048)
    e("v_add_u32 v3, s22, v1")
    e("v_subrev_u32 v4, 4, v3")
    e("s_waitcnt lgkmcnt(0)")
    stamp(0)
    e("s_add_u32 s12, s36, s11")
    e("s_addc_u32 s13, s37, 0")
    e("s_and_b32 s13, s13, 0xffff")
    e("s_mov_b32 s14, 4096")
    e("s_mov_b32 s15, 0x20000")
    e("s_add_u32 s16, s12, s7")
    e("s_addc_u32 s17, s13, 0")
    e("s_mov_b32 s18, 4096")
    e("s_mov_b32 s19, 0x20000")
    e("s_add_u32 s38, s38, s44")
    e("s_addc_u32 s39, s39, 0")
    e("s_load_dword s40, s[38:39], 0")
    e("s_cmp_lg_u32 s89, 0")
    e("s_cselect_b32 s7, 16, 0")
    e("s_load_dword s41, s[38:39], s7")
    def ipf():
        if not args.ipf: return
        e("s_cmp_ge_u32 s3, %d" % args.ipf)
        e("s_cbranch_scc1 L_noipf")
        e("s_cmp_ge_u32 s5, 24")
        e("s_cbranch_scc1 L_noipf")
        srd(52, 30, 2621440); srd(56, 32, 2621440)
        e("s_mul_i32 s46, s3, 24")
        e("s_add_u32 s46, s46, s5")
        pf_addr(80, 81, 82, 46, 512 * args.ipf0)
        e("buffer_load_dword v83, v80, s[52:55], 0 offen")
        e("buffer_load_dword v84, v80, s[56:59], 0 offen")
        g.l("L_noipf")
    ipf()
    HD = 48; HM = 64
    order = (2, 3, 1, 0) if args.horder else (0, 1, 2, 3)
    for b in order:
        S = "s[12:15]" if b < 2 else "s[16:19]"
        va, vb = ("v1", "v2") if b < 2 else ("v3", "v4")
        e("buffer_load_dwordx4 %s, %s, %s, 0 offen offset:%d%s" % (vr(HD + 4 * b, 4), va, S, 1024 * (b & 1), NH))
        if (b & 1) == 0:
            e("buffer_load_dword v%d, %s, %s, 0 offen%s" % (HM + b, vb, S, NH))
        else:
            e("buffer_load_dword v%d, %s, %s, 0 offen offset:1020%s" % (HM + b, va, S, NH))
    if not args.kvfirst:
        e("s_barrier")
    e("s_mul_i32 s20, s3, %d" % HSLOT)
    e("s_and_b32 s7, s3, 3")
    e("s_mul_i32 s21, s7, %d" % XCH)
    e("s_lshr_b32 s7, s3, 2")
    e("s_mul_i32 s7, s7, %d" % XG)
    e("s_add_u32 s21, s21, s7")
    e("s_add_u32 s21, s21, %d" % XB)
    for i in range(4):
        e("v_mov_b32 v%d, 0" % (4 + i))
    e("v_and_b32 v3, 31, v0")
    e("v_min_u32 v3, 27, v3")
    e("v_lshlrev_b32 v3, 4, v3")
    e("v_lshrrev_b32 v8, 5, v0")
    e("v_mul_u32_u24 v9, s23, v8")
    e("v_add3_u32 v3, v3, v9, s20")
    e("ds_write_b128 v3, v[4:7]")
    e("v_and_b32 v10, 31, v0")
    e("v_min_u32 v10, 16, v10")
    e("v_lshlrev_b32 v10, 2, v10")
    e("s_add_u32 s7, s49, 4")
    e("v_mul_u32_u24 v9, s7, v8")
    e("v_sub_u32 v10, v10, v9")
    e("s_lshl_b32 s7, s49, 1")
    e("s_add_u32 s7, s7, s21")
    e("s_add_u32 s7, s7, %d" % (X0OFF - 128))
    e("v_add_u32 v10, s7, v10")
    e("ds_write_b32 v10, v4")
    e("s_cmp_eq_u32 s89, 0")
    e("s_cbranch_scc1 L_nopad2")
    e("ds_write_b128 v3, v[4:7] offset:%d" % (2 * HCP_H))
    e("ds_write_b32 v10, v4 offset:%d" % XHALF)
    g.l("L_nopad2")
    VA = 1; VB = 2; VYW = 3
    e("v_add_u32 v40, s20, v1")
    e("v_add_u32 v46, s50, v40")
    e("v_add_u32 v47, s23, v40")
    e("v_add_u32 v76, s23, v46")
    e("v_and_b32 v41, 1, v0")
    e("v_xor_b32 v41, 1, v41")
    e("v_mul_u32_u24 v41, s23, v41")
    e("v_bfe_u32 v42, v0, 1, 3")
    e("v_lshlrev_b32 v42, 6, v42")
    e("v_lshrrev_b32 v43, 4, v0")
    e("v_lshlrev_b32 v44, 4, v43")
    e("v_add3_u32 v41, v41, v42, v44")
    e("v_add_u32 v%d, s20, v41" % VA)
    e("v_and_b32 v41, 1, v0")
    e("s_add_u32 s7, s49, 4")
    e("v_mul_u32_u24 v41, s7, v41")
    e("v_and_b32 v42, 15, v0")
    e("v_lshlrev_b32 v45, 2, v42")
    e("v_sub_u32 v41, v41, v45")
    e("v_add3_u32 v41, v41, v44, s21")
    e("v_add_u32 v%d, %d, v41" % (VB, X0OFF + 56))
    e("v_lshlrev_b32 v41, 8, v43")
    e("v_lshlrev_b32 v45, 3, v42")
    e("v_add3_u32 v41, v41, v45, s21")
    e("v_add_u32 v%d, %d, v41" % (VYW, X0OFF + 64))
    ACC = 8
    for i in range(32):
        e("v_mov_b32 v%d, 0" % (ACC + i))
    e("s_waitcnt lgkmcnt(0)")
    e("s_lshl_b32 s42, s40, 16")
    e("s_and_b32 s40, s40, 0xffff0000")
    e("s_lshl_b32 s43, s41, 16")
    e("s_and_b32 s41, s41, 0xffff0000")
    e("s_cmp_eq_u32 s45, 0")
    e("s_cselect_b32 s40, s42, s40")
    e("s_cselect_b32 s41, s43, s41")
    e("s_cmp_eq_u32 s89, 0")
    e("s_cselect_b32 s41, 0, s41")
    for n, b in enumerate(order):
        e("s_waitcnt vmcnt(%d)" % (6 - 2 * n))
        d = HD + 4 * b
        o = 68 + 4 * (n & 1)
        if b in (0, 2):
            e("s_mov_b64 exec, 1")
            e("v_lshlrev_b32 v77, 16, v%d" % d)
            e("v_and_b32 v78, 0xffff0000, v%d" % d)
            e("v_add_f32 v77, s%d, v77" % (40 + (b >> 1)))
            e("v_cvt_pk_bf16_f32 v%d, v77, v78" % d)
            e("s_mov_b64 exec, -1")
        e("ds_write_b128 %s, %s offset:%d" % ("v40" if b < 2 else "v46", vr(d, 4), 448 + 1024 * (b & 1)))
        e("v_alignbit_b32 v%d, v%d, v%d, 16" % (o + 0, d + 0, HM + b))
        e("v_alignbit_b32 v%d, v%d, v%d, 16" % (o + 1, d + 1, d + 0))
        e("v_alignbit_b32 v%d, v%d, v%d, 16" % (o + 2, d + 2, d + 1))
        e("v_alignbit_b32 v%d, v%d, v%d, 16" % (o + 3, d + 3, d + 2))
        e("ds_write_b128 %s, %s offset:%d" % ("v47" if b < 2 else "v76", vr(o, 4), 448 + 1024 * (b & 1)))
    e("v_mov_b32 v4, %d" % CTL)
    e("v_mov_b32 v5, 1")
    e("s_waitcnt lgkmcnt(0)")
    stamp(1)
    e("s_cmp_lg_u32 s89, 0")
    e("s_cbranch_scc1 L_mfma_h")

    def wait_flags(blocks):
        lp = g.newlab("L_xwait")
        g.l(lp)
        lo = blocks[0] & ~1
        n2 = (blocks[-1] - lo) // 2 + 1
        for i in range(n2):
            e("ds_read_b64 v[%d:%d], v4 offset:%d" % (120 + 2 * i, 121 + 2 * i, 4 * lo + 8 * i))
        e("s_waitcnt lgkmcnt(0)")
        r0 = 120 + blocks[0] - lo
        for b in blocks[1:]:
            e("v_and_b32 v%d, v%d, v%d" % (r0, r0, 120 + b - lo))
        e("s_nop 0")
        e("v_readfirstlane_b32 s7, v%d" % r0)
        e("s_bitcmp1_b32 s7, 2")
        e("s_cbranch_scc1 %s_done" % lp)
        e("s_sleep 1")
        e("s_branch %s" % lp)
        g.l(lp + "_done")

    def front(steps, setbase, nregs):
        setsize = 4 * max(len(st[0]) for st in steps)
        nsets = min(nregs // setsize, args.maxsets, len(steps) + 1)
        assert nsets >= 2
        LA = nsets - 1
        issued = []
        def regs(si, reads):
            m = {}; r = setbase + (si % nsets) * setsize
            for (key, kind, ar, off) in reads:
                m[key] = r; r += 4
            return m
        def rinstrs(si):
            reads = steps[si][0]; m = regs(si, reads); out = []
            for (key, kind, ar, off) in reads:
                if kind == 'A':
                    out.append(((si, key), "ds_read_b128 %s, v%d offset:%d" % (vr(m[key], 4), ar, off)))
                else:
                    out.append(((si, key), "ds_read_b64 %s, v%d offset:%d" % (vr(m[key], 2), ar, off)))
                    out.append(((si, key), "ds_read_b64 %s, v%d offset:%d" % (vr(m[key] + 2, 2), ar, off + 8)))
            return out
        done_upto = [0]
        def need(keys):
            last = max(i for i, k in enumerate(issued) if k in keys)
            if last < done_upto[0]: return
            n = min(len(issued) - 1 - last, 14)
            e("s_waitcnt lgkmcnt(%d)" % n)
            done_upto[0] = len(issued) - n
        for si in range(min(LA, len(steps))):
            for k, s_ in rinstrs(si):
                e(s_); issued.append(k)
        for si, (reads, mf) in enumerate(steps):
            m = regs(si, reads)
            nxt = rinstrs(si + LA) if si + LA < len(steps) else []
            nm = len(mf); pos = 0
            for i, (acc, ka, kb) in enumerate(mf):
                need({(si, ka), (si, kb)})
                e("v_mfma_f32_16x16x32_bf16 %s, %s, %s, %s" % (vr(acc, 4), vr(m[ka], 4), vr(m[kb], 4), vr(acc, 4)))
                tgt = min(len(nxt), (len(nxt) * (i + 1) + nm - 1) // nm)
                while pos < tgt:
                    k, s_ = nxt[pos]; e(s_); issued.append(k); pos += 1

    def mk_steps(qs, rlo, rhi, nblk, aoff, boff, accbase, tag):
        steps = []
        units = [(p, q) for q in qs for p in range(nblk) if rlo <= p + q <= rhi]
        units.sort(key=lambda u: (u[0], u[1]))
        for t in range(8):
            reads = []; seen = set()
            for (p, q) in units:
                for key in (('B', q, tag, t), ('A', p, tag, t)):
                    if key in seen: continue
                    seen.add(key)
                    if key[0] == 'A': reads.append((key, 'A', VA, aoff + 512 * p + 64 * t))
                    else: reads.append((key, 'B', VB, boff + 512 * (nblk - 1 - q) + 64 * t))
            mf = [(accbase + 4 * (p + q - rlo), ('A', p, tag, t), ('B', q, tag, t)) for (p, q) in units]
            steps.append((reads, mf))
        return steps
    def merge(steps, maxfr):
        out = []
        for s in steps:
            if out and len(out[-1][0]) + len(s[0]) <= maxfr:
                out[-1] = (out[-1][0] + s[0], out[-1][1] + s[1])
            else:
                out.append(s)
        return out

    def yout(accs, cnt_idx):
        e("s_nop 7")
        for (a, off) in accs:
            e("ds_write_b64 v%d, %s offset:%d" % (VYW, vr(a, 2), off))
            e("ds_write_b64 v%d, %s offset:%d" % (VYW, vr(a + 2, 2), off + 128))
        e("s_waitcnt lgkmcnt(0)")
        e("s_mov_b64 exec, 1")
        e("ds_add_u32 v4, v5 offset:%d" % (32 + 4 * cnt_idx))
        e("s_mov_b64 exec, -1")

    fronts = [[int(c) for c in f] for f in args.mfronts.split(",")]
    sl = 2
    for fi, f in enumerate(fronts):
        if args.mprio: e("s_setprio %d" % max(0, min(3, len(fronts) - 1 - fi)))
        wait_flags(f)
        stamp(sl); sl += 1
        front(mk_steps(f, 4, 7, 8, 0, 0, ACC, 0), 24, 96)
        if 5 in f:
            yout([(ACC, 1024), (ACC + 4, 1024 + XCP_M)], 2)
        if 7 in f:
            yout([(ACC + 8, 0), (ACC + 12, XCP_M)], 3)
        stamp(sl); sl += 1
    stamp_flush()
    e("s_endpgm")

    g.l("L_mfma_h")
    hfronts = [[int(c) for c in f] for f in args.hfronts.split(",")]
    sl = 2
    for fi, f in enumerate(hfronts):
        if args.mprio: e("s_setprio %d" % max(0, min(3, len(hfronts) - 1 - fi)))
        wait_flags(f)
        stamp(sl); sl += 1
        s0 = mk_steps(f, 0, 3, 4, 0, 0, ACC, 0)
        s1 = mk_steps(f, 0, 3, 4, 2 * HCP_H, XHALF, ACC + 16, 1)
        steps = []
        for a, b in zip(s0, s1): steps += [a, b]
        front(steps, 40, 80)
        if 1 in f:
            yout([(ACC, 1024), (ACC + 4, 1024 + XCP_H), (ACC + 16, XHALF + 1024), (ACC + 20, XHALF + 1024 + XCP_H)], 0)
        if 3 in f:
            yout([(ACC + 8, 0), (ACC + 12, XCP_H), (ACC + 24, XHALF), (ACC + 28, XHALF + XCP_H)], 1)
        stamp(sl); sl += 1
    stamp_flush()
    e("s_endpgm")

    if args.pwg:
        g.l("L_pf")
        e("s_waitcnt lgkmcnt(0)")
        srd(12, 30, 2621440); srd(16, 32, 2621440); srd(20, 28, 2621440)
        e("s_lshl_b32 s46, s3, 1")
        e("s_add_u32 s46, s46, s5")
        e("s_sub_u32 s46, s46, 30")
        pf_addr(8, 9, 10, 46, 0)
        n = 20
        for item in args.pprog.split(","):
            t = {"k": "s[12:15]", "v": "s[16:19]", "q": "s[20:23]"}[item[0]]
            row = int(item[1:])
            e("s_mov_b32 s7, %d" % (row * 1280))
            e("buffer_load_dword v%d, v8, %s, s7 offen" % (n, t)); n += 1
            e("s_barrier")
        e("s_waitcnt vmcnt(0)")
    g.l("L_end")
    e("s_endpgm")

    out = HEADER
    out += "; @launch grid=(%d,1,1) block=(1024,1,1) lds=%d\n" % (NWG, LDS_BYTES)
    out += '.amdgcn_target "amdgcn-amd-amdhsa--gfx950"\n.text\n.globl %s_kernel\n.p2align 8\n.type %s_kernel,@function\n' % (NAME, NAME)
    out += "\n".join(g.lines) + "\n"
    out += '''.section .rodata,"a"
.p2align 6
.amdhsa_kernel %s_kernel
  .amdhsa_next_free_vgpr 128
  .amdhsa_next_free_sgpr 102
  .amdhsa_accum_offset 128
  .amdhsa_group_segment_fixed_size 0
  .amdhsa_kernarg_size 120
  .amdhsa_user_sgpr_count 2
  .amdhsa_user_sgpr_kernarg_segment_ptr 1
  .amdhsa_system_sgpr_workgroup_id_x 1
  .amdhsa_float_denorm_mode_32 3
.end_amdhsa_kernel
''' % NAME
    return out

if __name__ == "__main__":
    ap = argparse.ArgumentParser()
    ap.add_argument("-o", default="cdna_kernels/%s.s" % NAME)
    ap.add_argument("--pwg", type=int, default=1)
    ap.add_argument("--hpf", type=int, default=0)
    ap.add_argument("--kvfirst", type=int, default=0)
    ap.add_argument("--ipf", type=int, default=0)
    ap.add_argument("--ipf0", type=int, default=1)
    ap.add_argument("--pprog", default="q0,q682,q1364")
    ap.add_argument("--stamp", type=int, default=0)
    ap.add_argument("--nth", type=int, default=0)
    ap.add_argument("--horder", type=int, default=0)
    ap.add_argument("--maxsets", type=int, default=2)
    ap.add_argument("--mprio", type=int, default=1)
    ap.add_argument("--mfronts", default="01,23,45,67")
    ap.add_argument("--hfronts", default="01,23")
    a = ap.parse_args()
    open(a.o, "w").write(build(a))
    print("wrote", a.o, "LDS", LDS_BYTES)
```

```python
import sys, argparse

NAME = "concat_heads__ssm_conv_h3__ssm_conv_h3__prompt"
HEADER = open("cdna_kernels/%s.s.ref" % NAME).read().split("; Override launch geometry")[0]

HCP_M = 4576; HCP_H = 2528
HSLOT = 4 * HCP_H
XB = 8 * HSLOT
XCH = 8960
XG = 4 * XCH + 64
XHALF = 4384
XCP_M = 4224; XCP_H = 2176
X0OFF = 16
CTL = XB + 8 * XCH + 128
LDS_BYTES = CTL + 128

class Gen:
    def __init__(self):
        self.lines = []; self.lab = 0
    def e(self, s): self.lines.append("    " + s)
    def l(self, s): self.lines.append(s + ":")
    def newlab(self, p="L"):
        self.lab += 1
        return "%s_%d" % (p, self.lab)

def vr(b, n=1):
    return "v%d" % b if n == 1 else "v[%d:%d]" % (b, b + n - 1)

def build(args):
    g = Gen(); e = g.e
    STAMP = args.stamp
    NH = " nt" if args.nth else ""
    def stamp(slot):
        if not STAMP: return
        if STAMP == 2 and slot != 0: return
        e("s_memtime s[90:91]" if STAMP == 3 else "s_memrealtime s[90:91]")
        e("s_waitcnt lgkmcnt(0)")
        if isinstance(slot, str):
            e("s_mov_b32 m0, %s" % slot); e("s_nop 0")
            e("v_writelane_b32 v127, s90, m0")
        else:
            e("v_writelane_b32 v127, s90, %s" % slot)
    def stamp_flush():
        if not STAMP: return
        e("s_waitcnt vmcnt(0)")
        e("s_memtime s[90:91]" if STAMP == 3 else "s_memrealtime s[90:91]")
        e("s_waitcnt lgkmcnt(0)")
        e("v_writelane_b32 v127, s90, 15")
        e("v_lshlrev_b32 v126, 2, v0")
        e("v_add_u32 v126, s96, v126")
        e("s_mov_b64 exec, 0xffff")
        e("buffer_store_dword v127, v126, s[92:95], 0 offen")
    def srd(d, p, n):
        if d != p: e("s_mov_b32 s%d, s%d" % (d, p))
        e("s_and_b32 s%d, s%d, 0xffff" % (d + 1, p + 1))
        e("s_mov_b32 s%d, %d" % (d + 2, n))
        e("s_mov_b32 s%d, 0x20000" % (d + 3))
    def sel(d, a, b):
        e("s_mov_b32 s%d, %d" % (d, b))
        e("s_cmov_b32 s%d, %d" % (d, a))

    def pf_addr(dst, t1, t2, sidx, rowbase_rows):
        e("s_lshl_b32 s7, s%d, 6" % sidx)
        e("v_add_u32 v%d, s7, v0" % dst)
        e("s_mov_b32 s7, 0xAAAB")
        e("v_mul_u32_u24 v%d, s7, v%d" % (t1, dst))
        e("v_lshrrev_b32 v%d, 17, v%d" % (t1, t1))
        e("v_mul_u32_u24 v%d, 3, v%d" % (t2, t1))
        e("v_sub_u32 v%d, v%d, v%d" % (t2, dst, t2))
        e("v_mul_u32_u24 v%d, 1280, v%d" % (t1, t1))
        e("v_lshlrev_b32 v%d, 7, v%d" % (t2, t2))
        e("s_add_u32 s7, s88, %d" % (rowbase_rows * 1280))
        e("v_add3_u32 v%d, v%d, v%d, s7" % (dst, t1, t2))
    NWG = 256 if args.pwg else 240
    g.l(NAME + "_kernel")
    e("s_cmp_ge_u32 s2, %d" % NWG)
    e("s_cbranch_scc1 L_end")
    e("v_lshrrev_b32 v1, 6, v0")
    e("s_and_b32 s4, s2, 7")
    e("s_lshr_b32 s5, s2, 3")
    e("v_readfirstlane_b32 s3, v1")
    e("v_and_b32 v0, 63, v0")
    if args.wswap:
        e("s_xor_b32 s3, s3, 8")
    e("s_lshr_b32 s6, s4, 2")
    e("s_mul_i32 s7, s6, 48")
    e("s_add_u32 s8, s0, s7")
    e("s_addc_u32 s9, s1, 0")
    e("s_load_dwordx4 s[28:31], s[8:9], 0")
    e("s_load_dwordx4 s[32:35], s[8:9], 16")
    e("s_load_dwordx4 s[36:39], s[8:9], 32")
    e("s_load_dwordx2 s[24:25], s[0:1], 96")
    if STAMP:
        e("s_load_dwordx2 s[92:93], s[0:1], 112")
        e("s_mov_b32 s94, 0x1000000")
        e("s_mov_b32 s95, 0x20000")
        e("s_lshl_b32 s96, s2, 4")
        e("s_add_u32 s96, s96, s3")
        e("s_lshl_b32 s96, s96, 6")
        e("v_mov_b32 v127, 0")
    e("s_and_b32 s7, s4, 3")
    e("s_mul_i32 s7, s7, 160")
    e("s_lshl_b32 s10, s5, 3")
    e("s_lshl_b32 s11, s5, 4")
    e("s_sub_u32 s11, s11, 320")
    e("s_cmp_ge_u32 s5, 20")
    e("s_cselect_b32 s10, s11, s10")
    e("s_cselect_b32 s89, 1, 0")
    e("s_add_u32 s10, s10, s7")
    e("s_lshl_b32 s88, s7, 1")
    e("s_and_b32 s88, s88, 0xffffff80")
    if args.pwg:
        e("s_cmp_ge_u32 s5, 30")
        e("s_cbranch_scc1 L_pf")
    e("v_lshlrev_b32 v1, 2, v0")
    e("v_and_b32 v1, 124, v1")
    e("v_add_u32 v1, %d, v1" % CTL)
    e("v_mov_b32 v2, 0")
    e("ds_write_b32 v1, v2")
    e("s_cmp_ge_u32 s3, 8")
    e("s_cbranch_scc1 L_mfma")

    VL = 1
    VO = 2
    VXL = 3
    VYL = 4
    VA_ = 5; VB_ = 6; VC_ = 7; VD_ = 8
    WP = 10
    W = 18
    K = 34
    V = 48
    T = 56
    XP = 86
    Q = 94
    QF = 102
    e("s_setprio 3")
    e("s_cmp_lg_u32 s89, 0")
    e("s_cselect_b32 s40, 2, 1")
    sel(41, 64, 128)
    sel(42, 0x000F000F, 0x00030003)
    e("s_mov_b32 s43, s42")
    sel(49, XCP_H, XCP_M)
    sel(50, XB + X0OFF + XCP_H + 2040, XB + X0OFF + XCP_M + 4088)
    e("s_cselect_b32 s44, 1, 2")
    e("s_cselect_b32 s45, 3, 1")
    e("v_lshrrev_b32 v%d, s40, v0" % VA_)
    e("v_and_b32 v%d, s45, v0" % VB_)
    e("v_mul_u32_u24 v%d, 5120, v%d" % (VL, VA_))
    e("v_lshlrev_b32 v%d, 3, v%d" % (VC_, VB_))
    e("s_lshl_b32 s7, s10, 1")
    e("v_add3_u32 v%d, v%d, v%d, s7" % (VL, VL, VC_))
    e("v_lshlrev_b32 v%d, 5, v%d" % (VD_, VB_))
    e("s_lshl_b32 s7, s10, 3")
    e("v_add_u32 v%d, s7, v%d" % (VD_, VD_))
    e("s_waitcnt lgkmcnt(0)")
    stamp(0)
    srd(12, 30, 2621440); srd(16, 32, 2621440); srd(20, 28, 2621440); srd(52, 34, 5120)
    if args.order2:
        e("s_cmp_lt_u32 s3, %d" % args.order2)
        e("s_cbranch_scc1 L_nobar1")
        e("s_setprio 2")
        e("s_barrier")
        g.l("L_nobar1")
    elif not args.kvfirst:
        e("s_barrier")
    e("buffer_load_dwordx4 %s, v%d, s[52:55], 0 offen" % (vr(WP, 4), VD_))
    e("buffer_load_dwordx4 %s, v%d, s[52:55], 0 offen offset:16" % (vr(WP + 4, 4), VD_))
    def issue_kv(chunk_sgpr):
        e("s_mul_i32 s7, s%d, s41" % chunk_sgpr)
        e("s_mul_i32 s7, s7, 1280")
        e("v_add_u32 v%d, s7, v%d" % (VC_, VL))
        e("v_subrev_u32 v%d, 3840, v%d" % (VD_, VC_))
        for r in range(4):
            e("buffer_load_dwordx2 %s, v%d, s[12:15], 0 offen offset:%d%s" % (vr(K + 6 + 2 * r, 2), VC_, 1280 * r, args.kfl))
            e("buffer_load_dwordx2 %s, v%d, s[16:19], 0 offen offset:%d%s" % (vr(V + 2 * r, 2), VC_, 1280 * r, args.vfl))
        e("s_mov_b64 exec, s[42:43]")
        for r in range(3):
            e("buffer_load_dwordx2 %s, v%d, s[12:15], 0 offen offset:%d" % (vr(K + 2 * r, 2), VD_, 1280 * r))
        e("s_mov_b64 exec, -1")
    e("s_mov_b32 s46, s3")
    if args.mswap:
        e("s_xor_b32 s7, s3, 4")
        e("s_cmp_eq_u32 s89, 0")
        e("s_cselect_b32 s46, s7, s3")
    issue_kv(46)
    if args.order2:
        e("s_cmp_ge_u32 s3, %d" % args.order2)
        e("s_cbranch_scc1 L_nobar2")
        e("s_barrier")
        g.l("L_nobar2")
        e("s_setprio 3")
    elif args.kvfirst:
        e("s_barrier")
    stamp(1)
    srd(24, 24, 5242880)
    e("v_mul_u32_u24 v%d, 10240, v%d" % (VO, VA_))
    e("s_mul_i32 s7, s6, 1280")
    e("s_lshl_b32 s11, s10, 1")
    e("s_add_u32 s7, s7, s11")
    e("v_lshlrev_b32 v%d, 3, v%d" % (T, VB_))
    e("v_add3_u32 v%d, v%d, v%d, s7" % (VO, VO, T))
    e("v_and_b32 v%d, 1, v%d" % (T, VB_))
    e("v_mul_u32_u24 v%d, %d, v%d" % (T, XG, T))
    e("v_lshrrev_b32 v%d, 1, v%d" % (T + 1, VB_))
    e("v_mul_u32_u24 v%d, %d, v%d" % (T + 1, XHALF, T + 1))
    e("v_add_u32 v%d, v%d, v%d" % (T, T, T + 1))
    e("v_lshlrev_b32 v%d, 3, v%d" % (T + 1, VA_))
    e("v_sub_u32 v%d, v%d, v%d" % (VXL, T, T + 1))
    e("v_add_u32 v%d, s50, v%d" % (VXL, VXL))
    e("v_lshlrev_b32 v%d, 4, v%d" % (T + 1, VA_))
    e("v_add_u32 v%d, v%d, v%d" % (VYL, T, T + 1))
    e("v_add_u32 v%d, %d, v%d" % (VYL, XB + X0OFF + 64, VYL))
    e("s_mov_b32 s48, 0xffff0000")
    e("s_waitcnt vmcnt(11)")
    for i in range(4):
        e("v_lshlrev_b32 v%d, 16, v%d" % (W + 4 * i + 0, WP + 2 * i))
        e("v_and_b32 v%d, s48, v%d" % (W + 4 * i + 1, WP + 2 * i))
        e("v_lshlrev_b32 v%d, 16, v%d" % (W + 4 * i + 2, WP + 2 * i + 1))
        e("v_and_b32 v%d, s48, v%d" % (W + 4 * i + 3, WP + 2 * i + 1))
    e("s_mov_b32 s47, 0")
    g.l("L_xjob")
    e("s_mul_i32 s7, s46, s41")
    e("s_lshl_b32 s11, s7, 1")
    e("v_subrev_u32 v%d, s11, v%d" % (VA_, VXL))
    e("v_subrev_u32 v%d, s49, v%d" % (VB_, VA_))
    e("v_subrev_u32 v%d, 4, v%d" % (9, VB_))
    e("s_lshr_b32 s7, s7, 8")
    e("s_lshl_b32 s7, s7, 2")
    e("s_add_u32 s51, s7, %d" % CTL)
    if args.hpf:
        e("s_waitcnt vmcnt(3)")
        e("s_cmp_eq_u32 s47, 2")
        e("s_cbranch_scc1 L_w1")
    e("s_waitcnt vmcnt(0)")
    g.l("L_w1")
    if args.ioprio: e("s_setprio 3")
    if STAMP == 1 or STAMP == 3:
        e("s_min_u32 s97, s47, 1"); e("s_lshl_b32 s97, s97, 1"); e("s_add_u32 s97, s97, 2"); stamp("s97")
    e("s_cmp_lg_u32 s89, 0")
    e("s_cbranch_scc1 L_dpp_h")
    for r in range(3):
        for d in range(2):
            e("v_mov_b32_dpp v%d, v%d row_shr:2 row_mask:0xf bank_mask:0xf" % (K + 2 * r + d, K + 2 * (r + 4) + d))
    e("s_branch L_dpp_done")
    g.l("L_dpp_h")
    for r in range(3):
        for d in range(2):
            e("v_mov_b32_dpp v%d, v%d row_shr:4 row_mask:0xf bank_mask:0xf" % (K + 2 * r + d, K + 2 * (r + 4) + d))
    g.l("L_dpp_done")
    for d in range(2):
        for r in (3, 4, 5, 6, 0, 1, 2):
            e("v_lshlrev_b32 v%d, 16, v%d" % (T + r, K + 2 * r + d))
            e("v_and_b32 v%d, s48, v%d" % (T + 7 + r, K + 2 * r + d))
        A = T + 14; U = T + 22
        for h in range(2):
            c = 2 * d + h
            for row in range(4):
                e("v_mul_f32 v%d, v%d, v%d" % (A + h * 4 + row, W + 4 * c + 3, T + 7 * h + row))
            for j in (2, 1, 0):
                for row in range(4):
                    e("v_fmac_f32 v%d, v%d, v%d" % (A + h * 4 + row, W + 4 * c + j, T + 7 * h + row + 3 - j))
        for row in range(4):
            e("v_lshlrev_b32 v%d, 16, v%d" % (U + row, V + 2 * row + d))
            e("v_and_b32 v%d, s48, v%d" % (U + 4 + row, V + 2 * row + d))
        for i in range(8):
            e("v_mul_f32 v%d, v%d, v%d" % (A + i, A + i, U + i))
        for h in range(2):
            c = 2 * d + h
            e("v_cvt_pk_bf16_f32 v%d, v%d, v%d" % (XP + 2 * c, A + h * 4 + 3, A + h * 4 + 2))
            e("v_cvt_pk_bf16_f32 v%d, v%d, v%d" % (XP + 2 * c + 1, A + h * 4 + 1, A + h * 4 + 0))
        for h in range(2):
            c = 2 * d + h
            e("ds_write_b64 v%d, %s offset:%d" % (VA_, vr(XP + 2 * c, 2), c * XCH))
        c = 2 * d
        e("ds_write2st64_b32 v9, v%d, v%d offset0:%d offset1:%d" % (XP + 2 * c, XP + 2 * c + 2, 35 * c, 35 * (c + 1)))
        e("ds_write2st64_b32 v%d, v%d, v%d offset0:%d offset1:%d" % (VB_, XP + 2 * c + 1, XP + 2 * c + 3, 35 * c, 35 * (c + 1)))
    e("v_mov_b32 v%d, s51" % T)
    e("v_mov_b32 v%d, s44" % (T + 1))
    e("s_waitcnt lgkmcnt(0)")
    e("s_mov_b64 exec, 1")
    e("ds_add_u32 v%d, v%d" % (T, T + 1))
    e("s_mov_b64 exec, -1")
    if STAMP == 1 or STAMP == 3:
        e("s_add_u32 s97, s97, 1"); stamp("s97")
    e("s_cmp_lg_u32 s47, 0")
    e("s_cbranch_scc1 L_xdone")
    e("s_mov_b32 s47, 1")
    e("s_setprio 2")
    e("s_add_u32 s46, s3, 8")
    issue_kv(46)
    if args.hpf:
        e("s_cmp_eq_u32 s89, 0")
        e("s_cbranch_scc1 L_xjob")
        e("s_cmp_lt_u32 s3, 4")
        e("s_cbranch_scc1 L_xjob")
        e("s_mul_i32 s56, s3, 10")
        e("s_add_u32 s56, s56, s5")
        e("s_sub_u32 s56, s56, 60")
        e("s_mov_b32 s47, 2")
        e("s_cmp_ge_u32 s56, 24")
        e("s_cbranch_scc1 L_hpf_q")
        pf_addr(Q, Q + 1, Q + 2, 56, 1536)
        e("buffer_load_dword v%d, v%d, s[12:15], 0 offen" % (Q + 3, Q))
        e("buffer_load_dword v%d, v%d, s[16:19], 0 offen" % (Q + 4, Q))
        e("buffer_load_dword v%d, v%d, s[16:19], 0 offen" % (Q + 5, Q) if args.hpf == 1 else "s_nop 0")
        e("s_branch L_xjob")
        g.l("L_hpf_q")
        e("s_sub_u32 s56, s56, 24")
        pf_addr(Q, Q + 1, Q + 2, 56, 0)
        e("s_mov_b32 s7, %d" % (1024 // 3 * 1280))
        e("buffer_load_dword v%d, v%d, s[20:23], 0 offen" % (Q + 3, Q))
        e("buffer_load_dword v%d, v%d, s[20:23], s7 offen" % (Q + 4, Q))
        e("s_mov_b32 s7, %d" % (2048 // 3 * 1280))
        e("buffer_load_dword v%d, v%d, s[20:23], s7 offen" % (Q + 5, Q))
    e("s_branch L_xjob")
    g.l("L_xdone")
    e("s_setprio 1")
    e("s_add_u32 s7, s3, 8")
    e("s_cmp_lg_u32 s89, 0")
    e("s_cselect_b32 s46, s3, s7")
    g.l("L_ejob")
    e("s_mul_i32 s56, s46, s41")
    e("s_mul_i32 s7, s56, 1280")
    e("v_add_u32 v%d, s7, v%d" % (VC_, VL))
    for r in range(4):
        e("buffer_load_dwordx2 %s, v%d, s[20:23], 0 offen offset:%d" % (vr(Q + 2 * r, 2), VC_, 1280 * r))
    e("s_mul_i32 s7, s56, 2560")
    e("v_add_u32 v%d, s7, v%d" % (VC_, VO))
    e("v_add_u32 v%d, 5120, v%d" % (VD_, VC_))
    e("s_and_b32 s7, s56, 255")
    e("s_lshl_b32 s7, s7, 2")
    e("s_bitcmp1_b32 s56, 8")
    e("s_cselect_b32 s11, s49, 0")
    e("s_add_u32 s7, s7, s11")
    e("s_bitcmp1_b32 s56, 9")
    e("s_cselect_b32 s11, 0, 1024")
    e("s_add_u32 s7, s7, s11")
    e("v_add_u32 v%d, s7, v%d" % (VA_, VYL))
    e("s_lshr_b32 s7, s56, 9")
    e("s_lshl_b32 s7, s7, 2")
    e("s_add_u32 s7, s7, %d" % (CTL + 32))
    e("v_mov_b32 v%d, s7" % VB_)
    e("s_waitcnt vmcnt(0)")
    if args.ioprio: e("s_setprio 3")
    if STAMP == 1 or STAMP == 3:
        e("s_add_u32 s97, s97, 1"); stamp("s97")
    for row in range(4):
        for d in range(2):
            e("v_lshlrev_b32 v%d, 16, v%d" % (QF + 4 * (2 * d) + row, Q + 2 * row + d))
            e("v_and_b32 v%d, s48, v%d" % (QF + 4 * (2 * d + 1) + row, Q + 2 * row + d))
    lp = g.newlab("L_ywait")
    g.l(lp)
    e("ds_read_b32 v%d, v%d" % (T, VB_))
    e("s_waitcnt lgkmcnt(0)")
    e("v_readfirstlane_b32 s7, v%d" % T)
    e("s_cmp_ge_u32 s7, 8")
    e("s_cbranch_scc1 %s_done" % lp)
    e("s_sleep 1")
    e("s_branch %s" % lp)
    g.l(lp + "_done")
    if STAMP == 1 or STAMP == 3:
        e("s_add_u32 s97, s97, 1"); stamp("s97")
    Y = T
    O = T + 16
    for c in range(4):
        e("ds_read_b128 %s, v%d offset:%d" % (vr(Y + 4 * c, 4), VA_, c * XCH))
    for d in range(2):
        e("s_waitcnt lgkmcnt(%d)" % (2 - 2 * d))
        for i in range(8):
            e("v_mul_f32 v%d, v%d, v%d" % (Y + 8 * d + i, Y + 8 * d + i, QF + 8 * d + i))
        for row in range(4):
            e("v_cvt_pk_bf16_f32 v%d, v%d, v%d" % (O + 2 * row + d, Y + 8 * d + row, Y + 8 * d + 4 + row))
    e("buffer_store_dwordx2 %s, v%d, s[24:27], 0 offen" % (vr(O, 2), VC_))
    e("buffer_store_dwordx2 %s, v%d, s[24:27], 0 offen offset:2560" % (vr(O + 2, 2), VC_))
    e("buffer_store_dwordx2 %s, v%d, s[24:27], 0 offen" % (vr(O + 4, 2), VD_))
    e("buffer_store_dwordx2 %s, v%d, s[24:27], 0 offen offset:2560" % (vr(O + 6, 2), VD_))
    e("s_cmp_ge_u32 s46, 8")
    e("s_cbranch_scc1 L_io_done")
    e("s_add_u32 s46, s46, 8")
    if args.ioprio: e("s_setprio 1")
    e("s_branch L_ejob")
    g.l("L_io_done")
    stamp_flush()
    e("s_endpgm")

    g.l("L_mfma")
    e("s_sub_u32 s3, s3, 8")
    e("s_add_u32 s7, s10, s3")
    e("s_lshl_b32 s11, s7, 12")
    e("s_lshr_b32 s44, s7, 1")
    e("s_lshl_b32 s44, s44, 2")
    e("s_and_b32 s45, s7, 1")
    e("v_lshlrev_b32 v1, 4, v0")
    e("v_subrev_u32 v2, 4, v1")
    e("s_cmp_lg_u32 s89, 0")
    e("s_cselect_b32 s7, 32768, 0")
    e("s_cselect_b32 s22, 0, 2048")
    sel(23, HCP_H, HCP_M)
    sel(49, XCP_H, XCP_M)
    sel(50, 2 * HCP_H, 2048)
    e("v_add_u32 v3, s22, v1")
    e("v_subrev_u32 v4, 4, v3")
    e("s_waitcnt lgkmcnt(0)")
    stamp(0)
    e("s_add_u32 s12, s36, s11")
    e("s_addc_u32 s13, s37, 0")
    e("s_and_b32 s13, s13, 0xffff")
    e("s_mov_b32 s14, 4096")
    e("s_mov_b32 s15, 0x20000")
    e("s_add_u32 s16, s12, s7")
    e("s_addc_u32 s17, s13, 0")
    e("s_mov_b32 s18, 4096")
    e("s_mov_b32 s19, 0x20000")
    e("s_add_u32 s38, s38, s44")
    e("s_addc_u32 s39, s39, 0")
    e("s_load_dword s40, s[38:39], 0")
    e("s_cmp_lg_u32 s89, 0")
    e("s_cselect_b32 s7, 16, 0")
    e("s_load_dword s41, s[38:39], s7")
    def ipf():
        if not args.ipf: return
        e("s_cmp_ge_u32 s3, %d" % args.ipf)
        e("s_cbranch_scc1 L_noipf")
        e("s_cmp_ge_u32 s5, 24")
        e("s_cbranch_scc1 L_noipf")
        srd(52, 30, 2621440); srd(56, 32, 2621440)
        e("s_mul_i32 s46, s3, 24")
        e("s_add_u32 s46, s46, s5")
        pf_addr(80, 81, 82, 46, 512 * args.ipf0)
        e("buffer_load_dword v83, v80, s[52:55], 0 offen")
        e("buffer_load_dword v84, v80, s[56:59], 0 offen")
        g.l("L_noipf")
    ipf()
    def ipfh():
        if not args.ipfh: return
        e("s_cmp_ge_u32 s3, %d" % args.ipfh)
        e("s_cbranch_scc1 L_noipfh")
        e("s_cmp_eq_u32 s89, 0")
        e("s_cbranch_scc1 L_noipfh")
        srd(52, 30, 2621440); srd(56, 32, 2621440)
        e("s_mul_i32 s46, s3, 10")
        e("s_add_u32 s46, s46, s5")
        e("s_sub_u32 s46, s46, 20")
        pf_addr(80, 81, 82, 46, args.ipfh0)
        e("buffer_load_dword v83, v80, s[52:55], 0 offen")
        e("buffer_load_dword v84, v80, s[56:59], 0 offen")
        g.l("L_noipfh")
    ipfh()
    HD = 48; HM = 64
    order = (0, 1, 2, 3)
    if args.order2:
        e("s_setprio 3")
        e("s_barrier")
    for b in order:
        S = "s[12:15]" if b < 2 else "s[16:19]"
        va = "v1" if b < 2 else "v3"
        e("buffer_load_dwordx4 %s, %s, %s, 0 offen offset:%d%s" % (vr(HD + 4 * b, 4), va, S, 1024 * (b & 1), NH))
    if not args.order2:
        e("s_barrier")
    else:
        e("s_setprio 0")
    e("s_mul_i32 s20, s3, %d" % HSLOT)
    e("s_and_b32 s7, s3, 3")
    e("s_mul_i32 s21, s7, %d" % XCH)
    e("s_lshr_b32 s7, s3, 2")
    e("s_mul_i32 s7, s7, %d" % XG)
    e("s_add_u32 s21, s21, s7")
    e("s_add_u32 s21, s21, %d" % XB)
    for i in range(4):
        e("v_mov_b32 v%d, 0" % (4 + i))
    e("v_and_b32 v3, 31, v0")
    e("v_min_u32 v3, 27, v3")
    e("v_lshlrev_b32 v3, 4, v3")
    e("v_lshrrev_b32 v8, 5, v0")
    e("v_mul_u32_u24 v9, s23, v8")
    e("v_add3_u32 v3, v3, v9, s20")
    e("ds_write_b128 v3, v[4:7]")
    e("v_and_b32 v10, 31, v0")
    e("v_min_u32 v10, 16, v10")
    e("v_lshlrev_b32 v10, 2, v10")
    e("s_add_u32 s7, s49, 4")
    e("v_mul_u32_u24 v9, s7, v8")
    e("v_sub_u32 v10, v10, v9")
    e("s_lshl_b32 s7, s49, 1")
    e("s_add_u32 s7, s7, s21")
    e("s_add_u32 s7, s7, %d" % (X0OFF - 128))
    e("v_add_u32 v10, s7, v10")
    e("ds_write_b32 v10, v4")
    e("s_cmp_eq_u32 s89, 0")
    e("s_cbranch_scc1 L_nopad2")
    e("ds_write_b128 v3, v[4:7] offset:%d" % (2 * HCP_H))
    e("ds_write_b32 v10, v4 offset:%d" % XHALF)
    g.l("L_nopad2")
    VA = 1; VB = 2; VYW = 3
    e("v_add_u32 v40, s20, v1")
    e("v_add_u32 v46, s50, v40")
    e("v_add_u32 v47, s23, v40")
    e("v_add_u32 v76, s23, v46")
    e("v_and_b32 v41, 1, v0")
    e("v_xor_b32 v41, 1, v41")
    e("v_mul_u32_u24 v41, s23, v41")
    e("v_bfe_u32 v42, v0, 1, 3")
    e("v_lshlrev_b32 v42, 6, v42")
    e("v_lshrrev_b32 v43, 4, v0")
    e("v_lshlrev_b32 v44, 4, v43")
    e("v_add3_u32 v41, v41, v42, v44")
    e("v_add_u32 v%d, s20, v41" % VA)
    e("v_and_b32 v41, 1, v0")
    e("s_add_u32 s7, s49, 4")
    e("v_mul_u32_u24 v41, s7, v41")
    e("v_and_b32 v42, 15, v0")
    e("v_lshlrev_b32 v45, 2, v42")
    e("v_sub_u32 v41, v41, v45")
    e("v_add3_u32 v41, v41, v44, s21")
    e("v_add_u32 v%d, %d, v41" % (VB, X0OFF + 56))
    e("v_lshlrev_b32 v41, 8, v43")
    e("v_lshlrev_b32 v45, 3, v42")
    e("v_add3_u32 v41, v41, v45, s21")
    e("v_add_u32 v%d, %d, v41" % (VYW, X0OFF + 64))
    ACC = 8
    for i in range(32):
        e("v_mov_b32 v%d, 0" % (ACC + i))
    e("s_waitcnt lgkmcnt(0)")
    e("s_lshl_b32 s42, s40, 16")
    e("s_and_b32 s40, s40, 0xffff0000")
    e("s_lshl_b32 s43, s41, 16")
    e("s_and_b32 s41, s41, 0xffff0000")
    e("s_cmp_eq_u32 s45, 0")
    e("s_cselect_b32 s40, s42, s40")
    e("s_cselect_b32 s41, s43, s41")
    e("s_cmp_eq_u32 s89, 0")
    e("s_cselect_b32 s41, 0, s41")
    for n, b in enumerate(order):
        d = HD + 4 * b
        o = 68 + 4 * (n & 1)
        if b == 0:
            e("v_mov_b32 v%d, 0" % HM)
        else:
            e("v_readlane_b32 s46, v%d, 63" % (d - 1))
            if b == 2:
                e("s_cmp_eq_u32 s89, 0")
                e("s_cselect_b32 s46, s46, 0")
            else:
                e("s_nop 1")
            e("v_mov_b32 v%d, s46" % (HM + b))
        e("s_waitcnt vmcnt(%d)" % (3 - n))
        e("s_nop 0")
        e("v_mov_b32_dpp v%d, v%d wave_shr:1 row_mask:0xf bank_mask:0xf" % (HM + b, d + 3))
        if b in (0, 2):
            e("s_mov_b64 exec, 1")
            e("v_lshlrev_b32 v77, 16, v%d" % d)
            e("v_and_b32 v78, 0xffff0000, v%d" % d)
            e("v_add_f32 v77, s%d, v77" % (40 + (b >> 1)))
            e("v_cvt_pk_bf16_f32 v%d, v77, v78" % d)
            e("s_mov_b64 exec, -1")
        e("ds_write_b128 %s, %s offset:%d" % ("v40" if b < 2 else "v46", vr(d, 4), 448 + 1024 * (b & 1)))
        e("v_alignbit_b32 v%d, v%d, v%d, 16" % (o + 0, d + 0, HM + b))
        e("v_alignbit_b32 v%d, v%d, v%d, 16" % (o + 1, d + 1, d + 0))
        e("v_alignbit_b32 v%d, v%d, v%d, 16" % (o + 2, d + 2, d + 1))
        e("v_alignbit_b32 v%d, v%d, v%d, 16" % (o + 3, d + 3, d + 2))
        e("ds_write_b128 %s, %s offset:%d" % ("v47" if b < 2 else "v76", vr(o, 4), 448 + 1024 * (b & 1)))
    e("v_mov_b32 v4, %d" % CTL)
    e("v_mov_b32 v5, 1")
    e("s_waitcnt lgkmcnt(0)")
    stamp(1)
    e("s_cmp_lg_u32 s89, 0")
    e("s_cbranch_scc1 L_mfma_h")

    def wait_flags(blocks):
        lp = g.newlab("L_xwait")
        g.l(lp)
        lo = blocks[0] & ~1
        n2 = (blocks[-1] - lo) // 2 + 1
        for i in range(n2):
            e("ds_read_b64 v[%d:%d], v4 offset:%d" % (120 + 2 * i, 121 + 2 * i, 4 * lo + 8 * i))
        e("s_waitcnt lgkmcnt(0)")
        r0 = 120 + blocks[0] - lo
        for b in blocks[1:]:
            e("v_and_b32 v%d, v%d, v%d" % (r0, r0, 120 + b - lo))
        e("s_nop 0")
        e("v_readfirstlane_b32 s7, v%d" % r0)
        e("s_bitcmp1_b32 s7, 2")
        e("s_cbranch_scc1 %s_done" % lp)
        e("s_sleep 1")
        e("s_branch %s" % lp)
        g.l(lp + "_done")

    def front(steps, setbase, nregs, maxsets):
        setsize = 4 * max(len(st[0]) for st in steps)
        nsets = min(nregs // setsize, maxsets, len(steps) + 1)
        assert nsets >= 2
        LA = nsets - 1
        issued = []
        def regs(si, reads):
            m = {}; r = setbase + (si % nsets) * setsize
            for (key, kind, ar, off) in reads:
                m[key] = r; r += 4
            return m
        def rinstrs(si):
            reads = steps[si][0]; m = regs(si, reads); out = []
            for (key, kind, ar, off) in reads:
                if kind == 'A':
                    out.append(((si, key), "ds_read_b128 %s, v%d offset:%d" % (vr(m[key], 4), ar, off)))
                else:
                    out.append(((si, key), "ds_read_b64 %s, v%d offset:%d" % (vr(m[key], 2), ar, off)))
                    out.append(((si, key), "ds_read_b64 %s, v%d offset:%d" % (vr(m[key] + 2, 2), ar, off + 8)))
            return out
        done_upto = [0]
        def need(keys):
            last = max(i for i, k in enumerate(issued) if k in keys)
            if last < done_upto[0]: return
            n = min(len(issued) - 1 - last, 14)
            e("s_waitcnt lgkmcnt(%d)" % n)
            done_upto[0] = len(issued) - n
        for si in range(min(LA, len(steps))):
            for k, s_ in rinstrs(si):
                e(s_); issued.append(k)
        for si, (reads, mf) in enumerate(steps):
            m = regs(si, reads)
            nxt = rinstrs(si + LA) if si + LA < len(steps) else []
            nm = len(mf); pos = 0
            for i, (acc, ka, kb) in enumerate(mf):
                need({(si, ka), (si, kb)})
                e("v_mfma_f32_16x16x32_bf16 %s, %s, %s, %s" % (vr(acc, 4), vr(m[ka], 4), vr(m[kb], 4), vr(acc, 4)))
                tgt = min(len(nxt), (len(nxt) * (i + 1) + nm - 1) // nm)
                while pos < tgt:
                    k, s_ = nxt[pos]; e(s_); issued.append(k); pos += 1

    def mk_steps(qs, rlo, rhi, nblk, aoff, boff, accbase, tag, skip7=(), add7=()):
        steps = []
        for t in range(8):
            qq = [q for q in qs if not (t == 7 and q in skip7)] + (list(add7) if t == 7 else [])
            units = [(p, q) for q in qq for p in range(nblk) if rlo <= p + q <= rhi]
            units.sort(key=lambda u: (u[0], u[1]))
            reads = []; seen = set()
            for (p, q) in units:
                for key in (('B', q, tag, t), ('A', p, tag, t)):
                    if key in seen: continue
                    seen.add(key)
                    if key[0] == 'A': reads.append((key, 'A', VA, aoff + 512 * p + 64 * t))
                    else: reads.append((key, 'B', VB, boff + 512 * (nblk - 1 - q) + 64 * t))
            mf = [(accbase + 4 * (p + q - rlo), ('A', p, tag, t), ('B', q, tag, t)) for (p, q) in units]
            if mf: steps.append((reads, mf))
        return steps
    def merge(steps, maxfr):
        out = []
        for s in steps:
            if out and len(out[-1][0]) + len(s[0]) <= maxfr:
                out[-1] = (out[-1][0] + s[0], out[-1][1] + s[1])
            else:
                out.append(s)
        return out

    def yout(accs, cnt_idx):
        e("s_nop 7")
        for (a, off) in accs:
            e("ds_write_b64 v%d, %s offset:%d" % (VYW, vr(a, 2), off))
            e("ds_write_b64 v%d, %s offset:%d" % (VYW, vr(a + 2, 2), off + 128))
        e("s_waitcnt lgkmcnt(0)")
        e("s_mov_b64 exec, 1")
        e("ds_add_u32 v4, v5 offset:%d" % (32 + 4 * cnt_idx))
        e("s_mov_b64 exec, -1")

    fronts = [[int(c) for c in f] for f in args.mfronts.split(",")]
    sl = 2
    for fi, f in enumerate(fronts):
        if args.mprio: e("s_setprio %s" % args.mp[fi])
        wait_flags(f)
        stamp(sl); sl += 1
        before = set(q for ff in fronts[:fi] for q in ff); now = before | set(f)
        skip7 = tuple(q for q in f if q > 0 and (q - 1) not in now)
        add7 = tuple(q + 1 for q in f if (q + 1) in before)
        front(mk_steps(f, 4, 7, 8, 0, 0, ACC, 0, skip7=skip7, add7=add7), 24, 96, args.lastsets if fi == len(fronts) - 1 else args.maxsets)
        if set(range(6)) <= now and not set(range(6)) <= before:
            yout([(ACC, 1024), (ACC + 4, 1024 + XCP_M)], 2)
        if fi == len(fronts) - 1:
            yout([(ACC + 8, 0), (ACC + 12, XCP_M)], 3)
        stamp(sl); sl += 1
    stamp_flush()
    e("s_endpgm")

    g.l("L_mfma_h")
    hfronts = [[int(c) for c in f] for f in args.hfronts.split(",")]
    sl = 2
    for fi, f in enumerate(hfronts):
        if args.mprio: e("s_setprio %s" % args.hp[fi])
        wait_flags(f)
        stamp(sl); sl += 1
        s0 = mk_steps(f, 0, 3, 4, 0, 0, ACC, 0)
        s1 = mk_steps(f, 0, 3, 4, 2 * HCP_H, XHALF, ACC + 16, 1)
        steps = []
        for a, b in zip(s0, s1): steps += [a, b]
        front(steps, 40, 80, args.lastsets if fi == len(hfronts) - 1 else args.maxsets)
        if 1 in f:
            yout([(ACC, 1024), (ACC + 4, 1024 + XCP_H), (ACC + 16, XHALF + 1024), (ACC + 20, XHALF + 1024 + XCP_H)], 0)
        if 3 in f:
            yout([(ACC + 8, 0), (ACC + 12, XCP_H), (ACC + 24, XHALF), (ACC + 28, XHALF + XCP_H)], 1)
        stamp(sl); sl += 1
    stamp_flush()
    e("s_endpgm")

    if args.pwg:
        g.l("L_pf")
        e("s_waitcnt lgkmcnt(0)")
        srd(12, 30, 2621440); srd(16, 32, 2621440); srd(20, 28, 2621440)
        e("s_lshl_b32 s46, s3, 1")
        e("s_add_u32 s46, s46, s5")
        e("s_sub_u32 s46, s46, 30")
        pf_addr(8, 9, 10, 46, 0)
        n = 20
        for item in args.pprog.split(","):
            t = {"k": "s[12:15]", "v": "s[16:19]", "q": "s[20:23]"}[item[0]]
            row = int(item[1:])
            e("s_mov_b32 s7, %d" % (row * 1280))
            e("buffer_load_dword v%d, v8, %s, s7 offen" % (n, t)); n += 1
            e("s_barrier")
        e("s_waitcnt vmcnt(0)")
    g.l("L_end")
    e("s_endpgm")

    out = HEADER
    out += "; @launch grid=(%d,1,1) block=(1024,1,1) lds=%d\n" % (NWG, LDS_BYTES)
    out += '.amdgcn_target "amdgcn-amd-amdhsa--gfx950"\n.text\n.globl %s_kernel\n.p2align 8\n.type %s_kernel,@function\n' % (NAME, NAME)
    out += "\n".join(g.lines) + "\n"
    out += '''.section .rodata,"a"
.p2align 6
.amdhsa_kernel %s_kernel
  .amdhsa_next_free_vgpr 128
  .amdhsa_next_free_sgpr 102
  .amdhsa_accum_offset 128
  .amdhsa_group_segment_fixed_size 0
  .amdhsa_kernarg_size 120
  .amdhsa_user_sgpr_count 2
  .amdhsa_user_sgpr_kernarg_segment_ptr 1
  .amdhsa_system_sgpr_workgroup_id_x 1
  .amdhsa_float_denorm_mode_32 3
.end_amdhsa_kernel
''' % NAME
    return out

if __name__ == "__main__":
    ap = argparse.ArgumentParser()
    ap.add_argument("-o", default="cdna_kernels/%s.s" % NAME)
    ap.add_argument("--pwg", type=int, default=1)
    ap.add_argument("--hpf", type=int, default=1)
    ap.add_argument("--kvfirst", type=int, default=0)
    ap.add_argument("--ipf", type=int, default=0)
    ap.add_argument("--kfl", default="")
    ap.add_argument("--vfl", default="")
    ap.add_argument("--mswap", type=int, default=0)
    ap.add_argument("--ipfh", type=int, default=0)
    ap.add_argument("--ipfh0", type=int, default=512)
    ap.add_argument("--wswap", type=int, default=1)
    ap.add_argument("--ioprio", type=int, default=1)
    ap.add_argument("--mp", default="2210")
    ap.add_argument("--hp", default="10")
    ap.add_argument("--order2", type=int, default=0)
    ap.add_argument("--lastsets", type=int, default=2)
    ap.add_argument("--ipf0", type=int, default=1)
    ap.add_argument("--pprog", default="k1024,v1024,q1024,q1706")
    ap.add_argument("--stamp", type=int, default=0)
    ap.add_argument("--nth", type=int, default=0)
    ap.add_argument("--horder", type=int, default=0)
    ap.add_argument("--maxsets", type=int, default=2)
    ap.add_argument("--mprio", type=int, default=1)
    ap.add_argument("--mfronts", default="01,23,45,67")
    ap.add_argument("--hfronts", default="01,23")
    a = ap.parse_args()
    open(a.o, "w").write(build(a))
    print("wrote", a.o, "LDS", LDS_BYTES)
```

```python
import sys, argparse

NAME = "concat_heads__ssm_conv_h3__ssm_conv_h3__prompt"
HEADER = open("cdna_kernels/%s.s.ref" % NAME).read().split("; Override launch geometry")[0]

HCP_M = 4576; HCP_H = 2528
HSLOT = 4 * HCP_H
XB = 8 * HSLOT
XCH = 8960
XG = 4 * XCH + 64
XHALF = 4384
XCP_M = 4224; XCP_H = 2176
X0OFF = 16
CTL = XB + 8 * XCH + 128
LDS_BYTES = CTL + 128

class Gen:
    def __init__(self):
        self.lines = []; self.lab = 0
    def e(self, s): self.lines.append("    " + s)
    def l(self, s): self.lines.append(s + ":")
    def newlab(self, p="L"):
        self.lab += 1
        return "%s_%d" % (p, self.lab)

def vr(b, n=1):
    return "v%d" % b if n == 1 else "v[%d:%d]" % (b, b + n - 1)

def build(args):
    g = Gen(); e = g.e
    STAMP = args.stamp
    NH = " nt" if args.nth else ""
    def stamp(slot):
        if not STAMP: return
        if STAMP == 2 and slot != 0: return
        if slot == 0:
            e("v_writelane_b32 v127, s98, 0"); return
        e("s_memtime s[90:91]" if STAMP == 3 else "s_memrealtime s[90:91]")
        e("s_waitcnt lgkmcnt(0)")
        if isinstance(slot, str):
            e("s_mov_b32 m0, %s" % slot); e("s_nop 0")
            e("v_writelane_b32 v127, s90, m0")
        else:
            e("v_writelane_b32 v127, s90, %s" % slot)
    def stamp_flush():
        if not STAMP: return
        e("s_waitcnt vmcnt(0)")
        e("s_memtime s[90:91]" if STAMP == 3 else "s_memrealtime s[90:91]")
        e("s_waitcnt lgkmcnt(0)")
        e("v_writelane_b32 v127, s90, 15")
        e("v_lshlrev_b32 v126, 2, v0")
        e("v_add_u32 v126, s96, v126")
        e("s_mov_b64 exec, 0xffff")
        e("buffer_store_dword v127, v126, s[92:95], 0 offen")
    def srd(d, p, n):
        if d != p: e("s_mov_b32 s%d, s%d" % (d, p))
        e("s_and_b32 s%d, s%d, 0xffff" % (d + 1, p + 1))
        e("s_mov_b32 s%d, %d" % (d + 2, n))
        e("s_mov_b32 s%d, 0x20000" % (d + 3))
    def sel(d, a, b):
        e("s_mov_b32 s%d, %d" % (d, b))
        e("s_cmov_b32 s%d, %d" % (d, a))

    def pf_addr(dst, t1, t2, sidx, rowbase_rows):
        e("s_lshl_b32 s7, s%d, 6" % sidx)
        e("v_add_u32 v%d, s7, v0" % dst)
        e("s_mov_b32 s7, 0xAAAB")
        e("v_mul_u32_u24 v%d, s7, v%d" % (t1, dst))
        e("v_lshrrev_b32 v%d, 17, v%d" % (t1, t1))
        e("v_mul_u32_u24 v%d, 3, v%d" % (t2, t1))
        e("v_sub_u32 v%d, v%d, v%d" % (t2, dst, t2))
        e("v_mul_u32_u24 v%d, 1280, v%d" % (t1, t1))
        e("v_lshlrev_b32 v%d, 7, v%d" % (t2, t2))
        e("s_add_u32 s7, s88, %d" % (rowbase_rows * 1280))
        e("v_add3_u32 v%d, v%d, v%d, s7" % (dst, t1, t2))
    NWG = 256 if args.pwg else 240
    g.l(NAME + "_kernel")
    if STAMP: e("s_memtime s[98:99]" if STAMP == 3 else "s_memrealtime s[98:99]")
    e("s_cmp_ge_u32 s2, %d" % NWG)
    e("s_cbranch_scc1 L_end")
    e("v_lshrrev_b32 v1, 6, v0")
    e("s_and_b32 s4, s2, 7")
    e("s_lshr_b32 s5, s2, 3")
    e("v_readfirstlane_b32 s3, v1")
    e("v_and_b32 v0, 63, v0")
    if args.wswap:
        e("s_xor_b32 s3, s3, 8")
    e("s_lshr_b32 s6, s4, 2")
    e("s_mul_i32 s7, s6, 48")
    e("s_add_u32 s8, s0, s7")
    e("s_addc_u32 s9, s1, 0")
    e("s_load_dwordx4 s[28:31], s[8:9], 0")
    e("s_load_dwordx4 s[32:35], s[8:9], 16")
    e("s_load_dwordx4 s[36:39], s[8:9], 32")
    e("s_load_dwordx2 s[24:25], s[0:1], 96")
    if args.cpf:
        e("s_cmp_lg_u32 s3, %d" % (8 if args.wswap else 0))
        e("s_cbranch_scc1 L_nocpf")
        e("s_getpc_b64 s[40:41]")
        g.l("L_pc")
        e("s_sub_u32 s40, s40, L_pc-%s_kernel" % NAME)
        e("s_subb_u32 s41, s41, 0")
        if args.cpf == 1:
            e("s_lshl_b32 s7, s5, 9")
            e("v_lshlrev_b32 v100, 7, v0")
            e("v_add_u32 v100, s7, v100")
            e("v_min_u32 v100, L_end-%s_kernel, v100" % NAME)
            e("s_mov_b64 exec, 15")
            e("global_load_dword v101, v100, s[40:41]")
            e("s_mov_b64 exec, -1")
        else:
            e("s_cmp_ge_u32 s5, 2")
            e("s_cbranch_scc1 L_nocpf")
            e("s_lshl_b32 s7, s5, 13")
            e("v_lshlrev_b32 v100, 7, v0")
            e("v_add_u32 v100, s7, v100")
            e("v_min_u32 v100, L_end-%s_kernel, v100" % NAME)
            e("global_load_dword v101, v100, s[40:41]")
        g.l("L_nocpf")
    if STAMP:
        e("s_load_dwordx2 s[92:93], s[0:1], 112")
        e("s_mov_b32 s94, 0x1000000")
        e("s_mov_b32 s95, 0x20000")
        e("s_lshl_b32 s96, s2, 4")
        e("s_add_u32 s96, s96, s3")
        e("s_lshl_b32 s96, s96, 6")
        e("v_mov_b32 v127, 0")
    e("s_and_b32 s7, s4, 3")
    e("s_mul_i32 s7, s7, 160")
    e("s_lshl_b32 s10, s5, 3")
    e("s_lshl_b32 s11, s5, 4")
    e("s_sub_u32 s11, s11, 320")
    e("s_cmp_ge_u32 s5, 20")
    e("s_cselect_b32 s10, s11, s10")
    e("s_cselect_b32 s89, 1, 0")
    e("s_add_u32 s10, s10, s7")
    e("s_lshl_b32 s88, s7, 1")
    e("s_and_b32 s88, s88, 0xffffff80")
    if args.pwg:
        e("s_cmp_ge_u32 s5, 30")
        e("s_cbranch_scc1 L_pf")
    e("v_lshlrev_b32 v1, 2, v0")
    e("v_and_b32 v1, 124, v1")
    e("v_add_u32 v1, %d, v1" % CTL)
    e("v_mov_b32 v2, 0")
    e("ds_write_b32 v1, v2")
    e("s_cmp_ge_u32 s3, 8")
    e("s_cbranch_scc1 L_mfma")
    mark_io = len(g.lines)

    VL = 1
    VO = 2
    VXL = 3
    VYL = 4
    VA_ = 5; VB_ = 6; VC_ = 7; VD_ = 8
    WP = 10
    W = 18
    K = 34
    V = 48
    T = 56
    XP = 86
    Q = 94
    QF = 102
    e("s_setprio 3")
    e("s_cmp_lg_u32 s89, 0")
    e("s_cselect_b32 s40, 2, 1")
    sel(41, 64, 128)
    sel(42, 0x000F000F, 0x00030003)
    e("s_mov_b32 s43, s42")
    sel(49, XCP_H, XCP_M)
    sel(50, XB + X0OFF + XCP_H + 2040, XB + X0OFF + XCP_M + 4088)
    e("s_cselect_b32 s44, 1, 2")
    e("s_cselect_b32 s45, 3, 1")
    e("v_lshrrev_b32 v%d, s40, v0" % VA_)
    e("v_and_b32 v%d, s45, v0" % VB_)
    e("v_mul_u32_u24 v%d, 5120, v%d" % (VL, VA_))
    e("v_lshlrev_b32 v%d, 3, v%d" % (VC_, VB_))
    e("s_lshl_b32 s7, s10, 1")
    e("v_add3_u32 v%d, v%d, v%d, s7" % (VL, VL, VC_))
    e("v_lshlrev_b32 v%d, 5, v%d" % (VD_, VB_))
    e("s_lshl_b32 s7, s10, 3")
    e("v_add_u32 v%d, s7, v%d" % (VD_, VD_))
    e("s_waitcnt lgkmcnt(0)")
    stamp(0)
    srd(12, 30, 2621440); srd(16, 32, 2621440); srd(20, 28, 2621440); srd(52, 34, 5120)
    if args.order3:
        e("s_cmp_lt_u32 s3, 4")
        e("s_cbranch_scc1 L_nobar1")
        e("s_barrier")
        g.l("L_nobar1")
    elif args.order2:
        e("s_cmp_lt_u32 s3, %d" % args.order2)
        e("s_cbranch_scc1 L_nobar1")
        e("s_setprio 2")
        e("s_barrier")
        g.l("L_nobar1")
    elif not args.kvfirst:
        e("s_barrier")
    e("buffer_load_dwordx4 %s, v%d, s[52:55], 0 offen" % (vr(WP, 4), VD_))
    e("buffer_load_dwordx4 %s, v%d, s[52:55], 0 offen offset:16" % (vr(WP + 4, 4), VD_))
    def rotated(seq, nrot):
        if nrot <= 1:
            for x in seq: e(x)
            return
        lp = g.newlab("L_rot")
        step = len(seq) // nrot
        e("s_and_b32 s7, s5, %d" % (nrot - 1))
        for j in range(1, nrot):
            e("s_cmp_eq_u32 s7, %d" % j)
            e("s_cbranch_scc1 %s_%d" % (lp, j))
        for j in range(nrot):
            if j: g.l("%s_%d" % (lp, j))
            for x in seq[j * step:] + seq[:j * step]: e(x)
            if j < nrot - 1: e("s_branch %s_end" % lp)
        g.l(lp + "_end")
    def issue_kv(chunk_sgpr):
        e("s_mul_i32 s7, s%d, s41" % chunk_sgpr)
        e("s_mul_i32 s7, s7, 1280")
        e("v_add_u32 v%d, s7, v%d" % (VC_, VL))
        e("v_subrev_u32 v%d, 3840, v%d" % (VD_, VC_))
        seq = []
        for r in range(4):
            seq.append("buffer_load_dwordx2 %s, v%d, s[12:15], 0 offen offset:%d%s" % (vr(K + 6 + 2 * r, 2), VC_, 1280 * r, args.kfl))
            seq.append("buffer_load_dwordx2 %s, v%d, s[16:19], 0 offen offset:%d%s" % (vr(V + 2 * r, 2), VC_, 1280 * r, args.vfl))
        rotated(seq, args.rot)
        e("s_mov_b64 exec, s[42:43]")
        for r in range(3):
            e("buffer_load_dwordx2 %s, v%d, s[12:15], 0 offen offset:%d" % (vr(K + 2 * r, 2), VD_, 1280 * r))
        e("s_mov_b64 exec, -1")
    e("s_mov_b32 s46, s3")
    if args.mswap:
        e("s_xor_b32 s7, s3, 4")
        e("s_cmp_eq_u32 s89, 0")
        e("s_cselect_b32 s46, s7, s3")
    issue_kv(46)
    if args.order3:
        e("s_cmp_ge_u32 s3, 4")
        e("s_cbranch_scc1 L_nobar2")
        e("s_barrier")
        g.l("L_nobar2")
    elif args.order2:
        e("s_cmp_ge_u32 s3, %d" % args.order2)
        e("s_cbranch_scc1 L_nobar2")
        e("s_barrier")
        g.l("L_nobar2")
        e("s_setprio 3")
    elif args.kvfirst:
        e("s_barrier")
    stamp(1)
    srd(24, 24, 5242880)
    e("v_mul_u32_u24 v%d, 10240, v%d" % (VO, VA_))
    e("s_mul_i32 s7, s6, 1280")
    e("s_lshl_b32 s11, s10, 1")
    e("s_add_u32 s7, s7, s11")
    e("v_lshlrev_b32 v%d, 3, v%d" % (T, VB_))
    e("v_add3_u32 v%d, v%d, v%d, s7" % (VO, VO, T))
    e("v_and_b32 v%d, 1, v%d" % (T, VB_))
    e("v_mul_u32_u24 v%d, %d, v%d" % (T, XG, T))
    e("v_lshrrev_b32 v%d, 1, v%d" % (T + 1, VB_))
    e("v_mul_u32_u24 v%d, %d, v%d" % (T + 1, XHALF, T + 1))
    e("v_add_u32 v%d, v%d, v%d" % (T, T, T + 1))
    e("v_lshlrev_b32 v%d, 3, v%d" % (T + 1, VA_))
    e("v_sub_u32 v%d, v%d, v%d" % (VXL, T, T + 1))
    e("v_add_u32 v%d, s50, v%d" % (VXL, VXL))
    e("v_lshlrev_b32 v%d, 4, v%d" % (T + 1, VA_))
    e("v_add_u32 v%d, v%d, v%d" % (VYL, T, T + 1))
    e("v_add_u32 v%d, %d, v%d" % (VYL, XB + X0OFF + 64, VYL))
    e("s_mov_b32 s48, 0xffff0000")
    e("s_waitcnt vmcnt(11)")
    for i in range(4):
        e("v_lshlrev_b32 v%d, 16, v%d" % (W + 4 * i + 0, WP + 2 * i))
        e("v_and_b32 v%d, s48, v%d" % (W + 4 * i + 1, WP + 2 * i))
        e("v_lshlrev_b32 v%d, 16, v%d" % (W + 4 * i + 2, WP + 2 * i + 1))
        e("v_and_b32 v%d, s48, v%d" % (W + 4 * i + 3, WP + 2 * i + 1))
    e("s_mov_b32 s47, 0")
    g.l("L_xjob")
    e("s_mul_i32 s7, s46, s41")
    e("s_lshl_b32 s11, s7, 1")
    e("v_subrev_u32 v%d, s11, v%d" % (VA_, VXL))
    e("v_subrev_u32 v%d, s49, v%d" % (VB_, VA_))
    e("v_subrev_u32 v%d, 4, v%d" % (9, VB_))
    e("s_lshr_b32 s7, s7, 8")
    e("s_lshl_b32 s7, s7, 2")
    e("s_add_u32 s51, s7, %d" % CTL)
    if args.hpf:
        e("s_waitcnt vmcnt(3)")
        e("s_cmp_eq_u32 s47, 2")
        e("s_cbranch_scc1 L_w1")
    e("s_waitcnt vmcnt(0)")
    g.l("L_w1")
    if args.ioprio: e("s_setprio 3")
    if STAMP == 1 or STAMP == 3:
        e("s_min_u32 s97, s47, 1"); e("s_lshl_b32 s97, s97, 1"); e("s_add_u32 s97, s97, 2"); stamp("s97")
    e("s_cmp_lg_u32 s89, 0")
    e("s_cbranch_scc1 L_dpp_h")
    for r in range(3):
        for d in range(2):
            e("v_mov_b32_dpp v%d, v%d row_shr:2 row_mask:0xf bank_mask:0xf" % (K + 2 * r + d, K + 2 * (r + 4) + d))
    e("s_branch L_dpp_done")
    g.l("L_dpp_h")
    for r in range(3):
        for d in range(2):
            e("v_mov_b32_dpp v%d, v%d row_shr:4 row_mask:0xf bank_mask:0xf" % (K + 2 * r + d, K + 2 * (r + 4) + d))
    g.l("L_dpp_done")
    for d in range(2):
        for r in (3, 4, 5, 6, 0, 1, 2):
            e("v_lshlrev_b32 v%d, 16, v%d" % (T + r, K + 2 * r + d))
            e("v_and_b32 v%d, s48, v%d" % (T + 7 + r, K + 2 * r + d))
        A = T + 14; U = T + 22
        for h in range(2):
            c = 2 * d + h
            for row in range(4):
                e("v_mul_f32 v%d, v%d, v%d" % (A + h * 4 + row, W + 4 * c + 3, T + 7 * h + row))
            for j in (2, 1, 0):
                for row in range(4):
                    e("v_fmac_f32 v%d, v%d, v%d" % (A + h * 4 + row, W + 4 * c + j, T + 7 * h + row + 3 - j))
        for row in range(4):
            e("v_lshlrev_b32 v%d, 16, v%d" % (U + row, V + 2 * row + d))
            e("v_and_b32 v%d, s48, v%d" % (U + 4 + row, V + 2 * row + d))
        for i in range(8):
            e("v_mul_f32 v%d, v%d, v%d" % (A + i, A + i, U + i))
        for h in range(2):
            c = 2 * d + h
            e("v_cvt_pk_bf16_f32 v%d, v%d, v%d" % (XP + 2 * c, A + h * 4 + 3, A + h * 4 + 2))
            e("v_cvt_pk_bf16_f32 v%d, v%d, v%d" % (XP + 2 * c + 1, A + h * 4 + 1, A + h * 4 + 0))
        for h in range(2):
            c = 2 * d + h
            e("ds_write_b64 v%d, %s offset:%d" % (VA_, vr(XP + 2 * c, 2), c * XCH))
        c = 2 * d
        e("ds_write2st64_b32 v9, v%d, v%d offset0:%d offset1:%d" % (XP + 2 * c, XP + 2 * c + 2, 35 * c, 35 * (c + 1)))
        e("ds_write2st64_b32 v%d, v%d, v%d offset0:%d offset1:%d" % (VB_, XP + 2 * c + 1, XP + 2 * c + 3, 35 * c, 35 * (c + 1)))
    e("v_mov_b32 v%d, s51" % T)
    e("v_mov_b32 v%d, s44" % (T + 1))
    e("s_waitcnt lgkmcnt(0)")
    e("s_mov_b64 exec, 1")
    e("ds_add_u32 v%d, v%d" % (T, T + 1))
    e("s_mov_b64 exec, -1")
    if STAMP == 1 or STAMP == 3:
        e("s_add_u32 s97, s97, 1"); stamp("s97")
    e("s_cmp_lg_u32 s47, 0")
    e("s_cbranch_scc1 L_xdone")
    if args.hack:
        e("s_cmp_lg_u32 s89, 0")
        e("s_cbranch_scc1 L_nohack")
        e("s_mov_b64 exec, 1")
        e("ds_add_u32 v%d, v%d offset:16" % (T, T + 1))
        e("s_mov_b64 exec, -1")
        e("s_branch L_xdone")
        g.l("L_nohack")
    e("s_mov_b32 s47, 1")
    e("s_setprio 2")
    e("s_add_u32 s46, s3, 8")
    issue_kv(46)
    if args.hpf:
        e("s_cmp_eq_u32 s89, 0")
        e("s_cbranch_scc1 L_xjob")
        e("s_cmp_lt_u32 s3, 4")
        e("s_cbranch_scc1 L_xjob")
        e("s_mul_i32 s56, s3, 10")
        e("s_add_u32 s56, s56, s5")
        e("s_sub_u32 s56, s56, 60")
        e("s_mov_b32 s47, 2")
        e("s_cmp_ge_u32 s56, 24")
        e("s_cbranch_scc1 L_hpf_q")
        pf_addr(Q, Q + 1, Q + 2, 56, 1536)
        e("buffer_load_dword v%d, v%d, s[12:15], 0 offen" % (Q + 3, Q))
        e("buffer_load_dword v%d, v%d, s[16:19], 0 offen" % (Q + 4, Q))
        e("buffer_load_dword v%d, v%d, s[16:19], 0 offen" % (Q + 5, Q) if args.hpf == 1 else "s_nop 0")
        e("s_branch L_xjob")
        g.l("L_hpf_q")
        e("s_sub_u32 s56, s56, 24")
        pf_addr(Q, Q + 1, Q + 2, 56, 0)
        e("s_mov_b32 s7, %d" % (1024 // 3 * 1280))
        e("buffer_load_dword v%d, v%d, s[20:23], 0 offen" % (Q + 3, Q))
        e("buffer_load_dword v%d, v%d, s[20:23], s7 offen" % (Q + 4, Q))
        e("s_mov_b32 s7, %d" % (2048 // 3 * 1280))
        e("buffer_load_dword v%d, v%d, s[20:23], s7 offen" % (Q + 5, Q))
    e("s_branch L_xjob")
    g.l("L_xdone")
    e("s_setprio 1")
    e("s_add_u32 s7, s3, 8")
    e("s_cmp_lg_u32 s89, 0")
    e("s_cselect_b32 s46, s3, s7")
    g.l("L_ejob")
    e("s_mul_i32 s56, s46, s41")
    e("s_mul_i32 s7, s56, 1280")
    e("v_add_u32 v%d, s7, v%d" % (VC_, VL))
    rotated(["buffer_load_dwordx2 %s, v%d, s[20:23], 0 offen offset:%d" % (vr(Q + 2 * r, 2), VC_, 1280 * r) for r in range(4)], args.qrot)
    e("s_mul_i32 s7, s56, 2560")
    e("v_add_u32 v%d, s7, v%d" % (VC_, VO))
    e("v_add_u32 v%d, 5120, v%d" % (VD_, VC_))
    e("s_and_b32 s7, s56, 255")
    e("s_lshl_b32 s7, s7, 2")
    e("s_bitcmp1_b32 s56, 8")
    e("s_cselect_b32 s11, s49, 0")
    e("s_add_u32 s7, s7, s11")
    e("s_bitcmp1_b32 s56, 9")
    e("s_cselect_b32 s11, 0, 1024")
    e("s_add_u32 s7, s7, s11")
    e("v_add_u32 v%d, s7, v%d" % (VA_, VYL))
    e("s_lshr_b32 s7, s56, 9")
    e("s_lshl_b32 s7, s7, 2")
    e("s_add_u32 s7, s7, %d" % (CTL + 32))
    e("v_mov_b32 v%d, s7" % VB_)
    e("s_waitcnt vmcnt(0)")
    if args.ioprio: e("s_setprio 3")
    if STAMP == 1 or STAMP == 3:
        e("s_add_u32 s97, s97, 1"); stamp("s97")
    for row in range(4):
        for d in range(2):
            e("v_lshlrev_b32 v%d, 16, v%d" % (QF + 4 * (2 * d) + row, Q + 2 * row + d))
            e("v_and_b32 v%d, s48, v%d" % (QF + 4 * (2 * d + 1) + row, Q + 2 * row + d))
    lp = g.newlab("L_ywait")
    if args.poll1: e("s_mov_b64 exec, 1")
    g.l(lp)
    e("ds_read_b32 v%d, v%d" % (T, VB_))
    e("s_waitcnt lgkmcnt(0)")
    e("v_readfirstlane_b32 s7, v%d" % T)
    e("s_cmp_ge_u32 s7, 8")
    e("s_cbranch_scc1 %s_done" % lp)
    if args.poll1:
        e("s_cmp_lg_u32 s7, 0")
        e("s_cbranch_scc1 %s_s" % lp)
        e("s_sleep %d" % args.ysleep)
        g.l(lp + "_s")
    e("s_sleep 1")
    e("s_branch %s" % lp)
    g.l(lp + "_done")
    if args.poll1: e("s_mov_b64 exec, -1")
    if STAMP == 1 or STAMP == 3:
        e("s_add_u32 s97, s97, 1"); stamp("s97")
    Y = T
    O = T + 16
    for c in range(4):
        e("ds_read_b128 %s, v%d offset:%d" % (vr(Y + 4 * c, 4), VA_, c * XCH))
    for d in range(2):
        e("s_waitcnt lgkmcnt(%d)" % (2 - 2 * d))
        for i in range(8):
            e("v_mul_f32 v%d, v%d, v%d" % (Y + 8 * d + i, Y + 8 * d + i, QF + 8 * d + i))
        for row in range(4):
            e("v_cvt_pk_bf16_f32 v%d, v%d, v%d" % (O + 2 * row + d, Y + 8 * d + row, Y + 8 * d + 4 + row))
    e("buffer_store_dwordx2 %s, v%d, s[24:27], 0 offen" % (vr(O, 2), VC_))
    e("buffer_store_dwordx2 %s, v%d, s[24:27], 0 offen offset:2560" % (vr(O + 2, 2), VC_))
    e("buffer_store_dwordx2 %s, v%d, s[24:27], 0 offen" % (vr(O + 4, 2), VD_))
    e("buffer_store_dwordx2 %s, v%d, s[24:27], 0 offen offset:2560" % (vr(O + 6, 2), VD_))
    e("s_cmp_ge_u32 s46, 8")
    e("s_cbranch_scc1 L_io_done")
    e("s_add_u32 s46, s46, 8")
    if args.ioprio: e("s_setprio 1")
    e("s_branch L_ejob")
    g.l("L_io_done")
    stamp_flush()
    e("s_endpgm")

    mark_mf = len(g.lines)
    g.l("L_mfma")
    e("s_sub_u32 s3, s3, 8")
    e("s_add_u32 s7, s10, s3")
    e("s_lshl_b32 s11, s7, 12")
    e("s_lshr_b32 s44, s7, 1")
    e("s_lshl_b32 s44, s44, 2")
    e("s_and_b32 s45, s7, 1")
    e("v_lshlrev_b32 v1, 4, v0")
    e("v_subrev_u32 v2, 4, v1")
    e("s_cmp_lg_u32 s89, 0")
    e("s_cselect_b32 s7, 32768, 0")
    e("s_cselect_b32 s22, 0, 2048")
    sel(23, HCP_H, HCP_M)
    sel(49, XCP_H, XCP_M)
    sel(50, 2 * HCP_H, 2048)
    e("v_add_u32 v3, s22, v1")
    e("v_subrev_u32 v4, 4, v3")
    e("s_waitcnt lgkmcnt(0)")
    stamp(0)
    e("s_add_u32 s12, s36, s11")
    e("s_addc_u32 s13, s37, 0")
    e("s_and_b32 s13, s13, 0xffff")
    e("s_mov_b32 s14, 4096")
    e("s_mov_b32 s15, 0x20000")
    e("s_add_u32 s16, s12, s7")
    e("s_addc_u32 s17, s13, 0")
    e("s_mov_b32 s18, 4096")
    e("s_mov_b32 s19, 0x20000")
    e("s_add_u32 s38, s38, s44")
    e("s_addc_u32 s39, s39, 0")
    e("s_load_dword s40, s[38:39], 0")
    e("s_cmp_lg_u32 s89, 0")
    e("s_cselect_b32 s7, 16, 0")
    e("s_load_dword s41, s[38:39], s7")
    def ipf():
        if not args.ipf: return
        e("s_cmp_ge_u32 s3, %d" % args.ipf)
        e("s_cbranch_scc1 L_noipf")
        e("s_cmp_ge_u32 s5, 24")
        e("s_cbranch_scc1 L_noipf")
        srd(52, 30, 2621440); srd(56, 32, 2621440)
        e("s_mul_i32 s46, s3, 24")
        e("s_add_u32 s46, s46, s5")
        pf_addr(80, 81, 82, 46, 512 * args.ipf0)
        e("buffer_load_dword v83, v80, s[52:55], 0 offen")
        e("buffer_load_dword v84, v80, s[56:59], 0 offen")
        g.l("L_noipf")
    ipf()
    def ipfh():
        if not args.ipfh: return
        e("s_cmp_ge_u32 s3, %d" % args.ipfh)
        e("s_cbranch_scc1 L_noipfh")
        e("s_cmp_eq_u32 s89, 0")
        e("s_cbranch_scc1 L_noipfh")
        srd(52, 30, 2621440); srd(56, 32, 2621440)
        e("s_mul_i32 s46, s3, 10")
        e("s_add_u32 s46, s46, s5")
        e("s_sub_u32 s46, s46, 20")
        pf_addr(80, 81, 82, 46, args.ipfh0)
        e("buffer_load_dword v83, v80, s[52:55], 0 offen")
        e("buffer_load_dword v84, v80, s[56:59], 0 offen")
        g.l("L_noipfh")
    ipfh()
    HD = 48; HM = 64
    order = (0, 1, 2, 3)
    if args.order3:
        e("s_setprio 3")
    elif args.order2:
        e("s_setprio 3")
        e("s_barrier")
    for b in order:
        S = "s[12:15]" if b < 2 else "s[16:19]"
        va = "v1" if b < 2 else "v3"
        e("buffer_load_dwordx4 %s, %s, %s, 0 offen offset:%d%s" % (vr(HD + 4 * b, 4), va, S, 1024 * (b & 1), NH))
    if args.order3:
        e("s_setprio 0")
    elif not args.order2:
        e("s_barrier")
    else:
        e("s_setprio 0")
    e("s_mul_i32 s20, s3, %d" % HSLOT)
    e("s_and_b32 s7, s3, 3")
    e("s_mul_i32 s21, s7, %d" % XCH)
    e("s_lshr_b32 s7, s3, 2")
    e("s_mul_i32 s7, s7, %d" % XG)
    e("s_add_u32 s21, s21, s7")
    e("s_add_u32 s21, s21, %d" % XB)
    for i in range(4):
        e("v_mov_b32 v%d, 0" % (4 + i))
    e("v_and_b32 v3, 31, v0")
    e("v_min_u32 v3, 27, v3")
    e("v_lshlrev_b32 v3, 4, v3")
    e("v_lshrrev_b32 v8, 5, v0")
    e("v_mul_u32_u24 v9, s23, v8")
    e("v_add3_u32 v3, v3, v9, s20")
    e("ds_write_b128 v3, v[4:7]")
    e("v_and_b32 v10, 31, v0")
    e("v_min_u32 v10, 16, v10")
    e("v_lshlrev_b32 v10, 2, v10")
    e("s_add_u32 s7, s49, 4")
    e("v_mul_u32_u24 v9, s7, v8")
    e("v_sub_u32 v10, v10, v9")
    e("s_lshl_b32 s7, s49, 1")
    e("s_add_u32 s7, s7, s21")
    e("s_add_u32 s7, s7, %d" % (X0OFF - 128))
    e("v_add_u32 v10, s7, v10")
    e("ds_write_b32 v10, v4")
    e("s_cmp_eq_u32 s89, 0")
    e("s_cbranch_scc1 L_nopad2")
    e("ds_write_b128 v3, v[4:7] offset:%d" % (2 * HCP_H))
    e("ds_write_b32 v10, v4 offset:%d" % XHALF)
    g.l("L_nopad2")
    VA = 1; VB = 2; VYW = 3
    e("v_add_u32 v40, s20, v1")
    e("v_add_u32 v46, s50, v40")
    e("v_add_u32 v47, s23, v40")
    e("v_add_u32 v76, s23, v46")
    e("v_and_b32 v41, 1, v0")
    e("v_xor_b32 v41, 1, v41")
    e("v_mul_u32_u24 v41, s23, v41")
    e("v_bfe_u32 v42, v0, 1, 3")
    e("v_lshlrev_b32 v42, 6, v42")
    e("v_lshrrev_b32 v43, 4, v0")
    e("v_lshlrev_b32 v44, 4, v43")
    e("v_add3_u32 v41, v41, v42, v44")
    e("v_add_u32 v%d, s20, v41" % VA)
    e("v_and_b32 v41, 1, v0")
    e("s_add_u32 s7, s49, 4")
    e("v_mul_u32_u24 v41, s7, v41")
    e("v_and_b32 v42, 15, v0")
    e("v_lshlrev_b32 v45, 2, v42")
    e("v_sub_u32 v41, v41, v45")
    e("v_add3_u32 v41, v41, v44, s21")
    e("v_add_u32 v%d, %d, v41" % (VB, X0OFF + 56))
    e("v_lshlrev_b32 v41, 8, v43")
    e("v_lshlrev_b32 v45, 3, v42")
    e("v_add3_u32 v41, v41, v45, s21")
    e("v_add_u32 v%d, %d, v41" % (VYW, X0OFF + 64))
    ACC = 8
    for i in range(32):
        e("v_mov_b32 v%d, 0" % (ACC + i))
    e("s_waitcnt lgkmcnt(0)")
    e("s_lshl_b32 s42, s40, 16")
    e("s_and_b32 s40, s40, 0xffff0000")
    e("s_lshl_b32 s43, s41, 16")
    e("s_and_b32 s41, s41, 0xffff0000")
    e("s_cmp_eq_u32 s45, 0")
    e("s_cselect_b32 s40, s42, s40")
    e("s_cselect_b32 s41, s43, s41")
    e("s_cmp_eq_u32 s89, 0")
    e("s_cselect_b32 s41, 0, s41")
    for n, b in enumerate(order):
        d = HD + 4 * b
        o = 68 + 4 * (n & 1)
        if b == 0:
            e("v_mov_b32 v%d, 0" % HM)
        else:
            e("v_readlane_b32 s46, v%d, 63" % (d - 1))
            if b == 2:
                e("s_cmp_eq_u32 s89, 0")
                e("s_cselect_b32 s46, s46, 0")
            else:
                e("s_nop 1")
            e("v_mov_b32 v%d, s46" % (HM + b))
        e("s_waitcnt vmcnt(%d)" % (3 - n))
        e("s_nop 0")
        e("v_mov_b32_dpp v%d, v%d wave_shr:1 row_mask:0xf bank_mask:0xf" % (HM + b, d + 3))
        if b in (0, 2):
            e("s_mov_b64 exec, 1")
            e("v_lshlrev_b32 v77, 16, v%d" % d)
            e("v_and_b32 v78, 0xffff0000, v%d" % d)
            e("v_add_f32 v77, s%d, v77" % (40 + (b >> 1)))
            e("v_cvt_pk_bf16_f32 v%d, v77, v78" % d)
            e("s_mov_b64 exec, -1")
        e("ds_write_b128 %s, %s offset:%d" % ("v40" if b < 2 else "v46", vr(d, 4), 448 + 1024 * (b & 1)))
        e("v_alignbit_b32 v%d, v%d, v%d, 16" % (o + 0, d + 0, HM + b))
        e("v_alignbit_b32 v%d, v%d, v%d, 16" % (o + 1, d + 1, d + 0))
        e("v_alignbit_b32 v%d, v%d, v%d, 16" % (o + 2, d + 2, d + 1))
        e("v_alignbit_b32 v%d, v%d, v%d, 16" % (o + 3, d + 3, d + 2))
        e("ds_write_b128 %s, %s offset:%d" % ("v47" if b < 2 else "v76", vr(o, 4), 448 + 1024 * (b & 1)))
    e("v_mov_b32 v4, %d" % CTL)
    e("v_mov_b32 v5, 1")
    e("s_waitcnt lgkmcnt(0)")
    stamp(1)
    if args.order3: e("s_barrier")
    e("s_cmp_lg_u32 s89, 0")
    e("s_cbranch_scc1 L_mfma_h")

    if args.layout:
        e("s_branch L_mfma_m")
        io = g.lines[mark_io:mark_mf]; mf = g.lines[mark_mf:]
        head = g.lines[:mark_io - 2] + ["    s_cmp_lt_u32 s3, 8", "    s_cbranch_scc1 L_io"]
        g.lines[:] = head + mf + ["L_io:"] + io + ["L_mfma_m:"]
    def wait_flags(blocks):
        lp = g.newlab("L_xwait")
        if args.poll1: e("s_mov_b64 exec, 1")
        g.l(lp)
        lo = blocks[0] & ~1
        n2 = (blocks[-1] - lo) // 2 + 1
        for i in range(n2):
            e("ds_read_b64 v[%d:%d], v4 offset:%d" % (120 + 2 * i, 121 + 2 * i, 4 * lo + 8 * i))
        e("s_waitcnt lgkmcnt(0)")
        r0 = 120 + blocks[0] - lo
        for b in blocks[1:]:
            e("v_and_b32 v%d, v%d, v%d" % (r0, r0, 120 + b - lo))
        e("s_nop 0")
        e("v_readfirstlane_b32 s7, v%d" % r0)
        e("s_bitcmp1_b32 s7, 2")
        e("s_cbranch_scc1 %s_done" % lp)
        e("s_sleep 1")
        e("s_branch %s" % lp)
        g.l(lp + "_done")
        if args.poll1: e("s_mov_b64 exec, -1")

    def front(steps, setbase, nregs, maxsets, waitfn, allA=False):
        if allA:
            nA = sum(1 for st in steps for r in st[0] if r[1] == 'A')
            bsz = 4 * max(sum(1 for r in st[0] if r[1] == 'B') for st in steps)
            nsets = min((nregs - 4 * nA) // bsz, len(steps) + 1)
            amap = {}; r = setbase
            for si, st in enumerate(steps):
                for (key, kind, ar, off) in st[0]:
                    if kind == 'A': amap[key] = r; r += 4
            bbase = r
            def regs(si, reads):
                m = {}; r = bbase + (si % nsets) * bsz
                for (key, kind, ar, off) in reads:
                    if kind == 'A': m[key] = amap[key]
                    else: m[key] = r; r += 4
                return m
        else:
            setsize = 4 * max(len(st[0]) for st in steps)
            nsets = min(nregs // setsize, maxsets, len(steps) + 1)
            def regs(si, reads):
                m = {}; r = setbase + (si % nsets) * setsize
                for (key, kind, ar, off) in reads:
                    m[key] = r; r += 4
                return m
        assert nsets >= 2
        LA = nsets - 1
        issued = []; pre = set()
        def rinstrs(si, kinds="AB"):
            reads = steps[si][0]; m = regs(si, reads); out = []
            for (key, kind, ar, off) in reads:
                if kind not in kinds or (si, key) in pre: continue
                if kind == 'A':
                    out.append(((si, key), "ds_read_b128 %s, v%d offset:%d" % (vr(m[key], 4), ar, off)))
                else:
                    out.append(((si, key), "ds_read_b64 %s, v%d offset:%d" % (vr(m[key], 2), ar, off)))
                    out.append(((si, key), "ds_read_b64 %s, v%d offset:%d" % (vr(m[key] + 2, 2), ar, off + 8)))
            return out
        done_upto = [0]
        def need(keys):
            keys = keys - pre
            if not keys: return
            last = max(i for i, k in enumerate(issued) if k in keys)
            if last < done_upto[0]: return
            n = min(len(issued) - 1 - last, 14)
            e("s_waitcnt lgkmcnt(%d)" % n)
            done_upto[0] = len(issued) - n
        if args.preA:
            for si in range(len(steps) if allA else min(LA, len(steps))):
                l_ = rinstrs(si, "A")
                for k, s_ in l_: e(s_)
                for k, s_ in l_: pre.add(k)
        waitfn()
        for si in range(min(LA, len(steps))):
            for k, s_ in rinstrs(si):
                e(s_); issued.append(k)
        for si, (reads, mf) in enumerate(steps):
            m = regs(si, reads)
            nxt = rinstrs(si + LA) if si + LA < len(steps) else []
            nm = len(mf); pos = 0
            for i, (acc, ka, kb) in enumerate(mf):
                need({(si, ka), (si, kb)})
                e("v_mfma_f32_16x16x32_bf16 %s, %s, %s, %s" % (vr(acc, 4), vr(m[ka], 4), vr(m[kb], 4), vr(acc, 4)))
                tgt = min(len(nxt), (len(nxt) * (i + 1) + nm - 1) // nm)
                while pos < tgt:
                    k, s_ = nxt[pos]; e(s_); issued.append(k); pos += 1

    def mk_steps(qs, rlo, rhi, nblk, aoff, boff, accbase, tag, skip7=(), add7=()):
        steps = []
        for t in range(8):
            qq = [q for q in qs if not (t == 7 and q in skip7)] + (list(add7) if t == 7 else [])
            units = [(p, q) for q in qq for p in range(nblk) if rlo <= p + q <= rhi]
            units.sort(key=lambda u: (u[0], u[1]))
            reads = []; seen = set()
            for (p, q) in units:
                for key in (('B', q, tag, t), ('A', p, tag, t)):
                    if key in seen: continue
                    seen.add(key)
                    if key[0] == 'A': reads.append((key, 'A', VA, aoff + 512 * p + 64 * t))
                    else: reads.append((key, 'B', VB, boff + 512 * (nblk - 1 - q) + 64 * t))
            mf = [(accbase + 4 * (p + q - rlo), ('A', p, tag, t), ('B', q, tag, t)) for (p, q) in units]
            if mf: steps.append((reads, mf))
        return steps
    def merge(steps, maxfr):
        out = []
        for s in steps:
            if out and len(out[-1][0]) + len(s[0]) <= maxfr:
                out[-1] = (out[-1][0] + s[0], out[-1][1] + s[1])
            else:
                out.append(s)
        return out

    def yout(accs, cnt_idx):
        e("s_nop 7")
        for (a, off) in accs:
            e("ds_write_b64 v%d, %s offset:%d" % (VYW, vr(a, 2), off))
            e("ds_write_b64 v%d, %s offset:%d" % (VYW, vr(a + 2, 2), off + 128))
        e("s_waitcnt lgkmcnt(0)")
        e("s_mov_b64 exec, 1")
        e("ds_add_u32 v4, v5 offset:%d" % (32 + 4 * cnt_idx))
        e("s_mov_b64 exec, -1")

    fronts = [[int(c) for c in f] for f in args.mfronts.split(",")]
    sl = 2
    for fi, f in enumerate(fronts):
        if args.mprio: e("s_setprio %s" % args.mp[fi])
        def wf(f=f, sl=sl):
            wait_flags(f); stamp(sl)
        sl += 1
        before = set(q for ff in fronts[:fi] for q in ff); now = before | set(f)
        skip7 = tuple(q for q in f if q > 0 and (q - 1) not in now)
        add7 = tuple(q + 1 for q in f if (q + 1) in before)
        front(mk_steps(f, 4, 7, 8, 0, 0, ACC, 0, skip7=skip7, add7=add7), 24, 96, args.lastsets if fi == len(fronts) - 1 else args.maxsets, wf, allA=(args.preA >= 2 and fi == len(fronts) - 1))
        if set(range(6)) <= now and not set(range(6)) <= before:
            yout([(ACC, 1024), (ACC + 4, 1024 + XCP_M)], 2)
        if fi == len(fronts) - 1:
            yout([(ACC + 8, 0), (ACC + 12, XCP_M)], 3)
        stamp(sl); sl += 1
    stamp_flush()
    e("s_endpgm")

    g.l("L_mfma_h")
    hfronts = [[int(c) for c in f] for f in args.hfronts.split(",")]
    sl = 2
    for fi, f in enumerate(hfronts):
        if args.mprio: e("s_setprio %s" % args.hp[fi])
        def wf(f=f, sl=sl):
            wait_flags(f); stamp(sl)
        sl += 1
        s0 = mk_steps(f, 0, 3, 4, 0, 0, ACC, 0)
        s1 = mk_steps(f, 0, 3, 4, 2 * HCP_H, XHALF, ACC + 16, 1)
        steps = []
        for a, b in zip(s0, s1): steps += [a, b]
        front(steps, 40, 80, args.lastsets if fi == len(hfronts) - 1 else args.maxsets, wf)
        if 1 in f:
            yout([(ACC, 1024), (ACC + 4, 1024 + XCP_H), (ACC + 16, XHALF + 1024), (ACC + 20, XHALF + 1024 + XCP_H)], 0)
        if 3 in f:
            yout([(ACC + 8, 0), (ACC + 12, XCP_H), (ACC + 24, XHALF), (ACC + 28, XHALF + XCP_H)], 1)
        stamp(sl); sl += 1
    stamp_flush()
    e("s_endpgm")

    if args.pwg:
        g.l("L_pf")
        e("s_waitcnt lgkmcnt(0)")
        srd(12, 30, 2621440); srd(16, 32, 2621440); srd(20, 28, 2621440)
        e("s_lshl_b32 s46, s3, 1")
        e("s_add_u32 s46, s46, s5")
        e("s_sub_u32 s46, s46, 30")
        pf_addr(8, 9, 10, 46, 0)
        n = 20
        for item in args.pprog.split(","):
            t = {"k": "s[12:15]", "v": "s[16:19]", "q": "s[20:23]"}[item[0]]
            row = int(item[1:])
            e("s_mov_b32 s7, %d" % (row * 1280))
            e("buffer_load_dword v%d, v8, %s, s7 offen" % (n, t)); n += 1
            e("s_barrier")
        e("s_waitcnt vmcnt(0)")
    g.l("L_end")
    e("s_endpgm")

    out = HEADER
    out += "; @launch grid=(%d,1,1) block=(1024,1,1) lds=%d\n" % (NWG, LDS_BYTES)
    out += '.amdgcn_target "amdgcn-amd-amdhsa--gfx950"\n.text\n.globl %s_kernel\n.p2align 8\n.type %s_kernel,@function\n' % (NAME, NAME)
    out += "\n".join(g.lines) + "\n"
    out += '''.section .rodata,"a"
.p2align 6
.amdhsa_kernel %s_kernel
  .amdhsa_next_free_vgpr 128
  .amdhsa_next_free_sgpr 102
  .amdhsa_accum_offset 128
  .amdhsa_group_segment_fixed_size 0
  .amdhsa_kernarg_size 120
  .amdhsa_user_sgpr_count 2
  .amdhsa_user_sgpr_kernarg_segment_ptr 1
  .amdhsa_system_sgpr_workgroup_id_x 1
  .amdhsa_float_denorm_mode_32 3
.end_amdhsa_kernel
''' % NAME
    return out

if __name__ == "__main__":
    ap = argparse.ArgumentParser()
    ap.add_argument("-o", default="cdna_kernels/%s.s" % NAME)
    ap.add_argument("--pwg", type=int, default=1)
    ap.add_argument("--hpf", type=int, default=1)
    ap.add_argument("--kvfirst", type=int, default=0)
    ap.add_argument("--ipf", type=int, default=0)
    ap.add_argument("--kfl", default="")
    ap.add_argument("--vfl", default="")
    ap.add_argument("--mswap", type=int, default=0)
    ap.add_argument("--order3", type=int, default=1)
    ap.add_argument("--layout", type=int, default=1)
    ap.add_argument("--poll1", type=int, default=1)
    ap.add_argument("--ysleep", type=int, default=4)
    ap.add_argument("--hack", type=int, default=0)
    ap.add_argument("--rot", type=int, default=8)
    ap.add_argument("--qrot", type=int, default=1)
    ap.add_argument("--preA", type=int, default=2)
    ap.add_argument("--cpf", type=int, default=0)
    ap.add_argument("--ipfh", type=int, default=0)
    ap.add_argument("--ipfh0", type=int, default=512)
    ap.add_argument("--wswap", type=int, default=1)
    ap.add_argument("--ioprio", type=int, default=1)
    ap.add_argument("--mp", default="2210")
    ap.add_argument("--hp", default="10")
    ap.add_argument("--order2", type=int, default=0)
    ap.add_argument("--lastsets", type=int, default=2)
    ap.add_argument("--ipf0", type=int, default=1)
    ap.add_argument("--pprog", default="k1024,v1024,q1024,q1706")
    ap.add_argument("--stamp", type=int, default=0)
    ap.add_argument("--nth", type=int, default=0)
    ap.add_argument("--horder", type=int, default=0)
    ap.add_argument("--maxsets", type=int, default=2)
    ap.add_argument("--mprio", type=int, default=1)
    ap.add_argument("--mfronts", default="01,23,45,67")
    ap.add_argument("--hfronts", default="01,23")
    a = ap.parse_args()
    open(a.o, "w").write(build(a))
    print("wrote", a.o, "LDS", LDS_BYTES)
```

```python
import sys, argparse

NAME = "concat_heads__ssm_conv_h3__ssm_conv_h3__prompt"
HEADER = open("cdna_kernels/%s.s.ref" % NAME).read().split("; Override launch geometry")[0]

HCP_M = 4576; HCP_H = 2528
HSLOT = 4 * HCP_H
XB = 8 * HSLOT
XCH = 8960
XG = 4 * XCH + 64
XHALF = 4384
XCP_M = 4224; XCP_H = 2176
X0OFF = 16
CTL = XB + 8 * XCH + 128
LDS_BYTES = CTL + 128

class Gen:
    def __init__(self):
        self.lines = []; self.lab = 0
    def e(self, s): self.lines.append("    " + s)
    def l(self, s): self.lines.append(s + ":")
    def newlab(self, p="L"):
        self.lab += 1
        return "%s_%d" % (p, self.lab)

def vr(b, n=1):
    return "v%d" % b if n == 1 else "v[%d:%d]" % (b, b + n - 1)

def build(args):
    g = Gen(); e = g.e
    STAMP = args.stamp
    NH = " nt" if args.nth else ""
    def stamp(slot):
        if not STAMP: return
        if STAMP == 2 and slot != 0: return
        if slot == 0:
            e("v_writelane_b32 v127, s98, 0"); return
        e("s_memtime s[90:91]" if STAMP == 3 else "s_memrealtime s[90:91]")
        e("s_waitcnt lgkmcnt(0)")
        if isinstance(slot, str):
            e("s_mov_b32 m0, %s" % slot); e("s_nop 0")
            e("v_writelane_b32 v127, s90, m0")
        else:
            e("v_writelane_b32 v127, s90, %s" % slot)
    def stamp_flush():
        if not STAMP: return
        e("s_waitcnt vmcnt(0)")
        e("s_memtime s[90:91]" if STAMP == 3 else "s_memrealtime s[90:91]")
        e("s_waitcnt lgkmcnt(0)")
        e("v_writelane_b32 v127, s90, 15")
        e("v_lshlrev_b32 v126, 2, v0")
        e("v_add_u32 v126, s96, v126")
        e("s_mov_b64 exec, 0xffff")
        e("buffer_store_dword v127, v126, s[92:95], 0 offen")
    def srd(d, p, n):
        if d != p: e("s_mov_b32 s%d, s%d" % (d, p))
        e("s_and_b32 s%d, s%d, 0xffff" % (d + 1, p + 1))
        e("s_mov_b32 s%d, %d" % (d + 2, n))
        e("s_mov_b32 s%d, 0x20000" % (d + 3))
    def sel(d, a, b):
        e("s_mov_b32 s%d, %d" % (d, b))
        e("s_cmov_b32 s%d, %d" % (d, a))

    def pf_addr(dst, t1, t2, sidx, rowbase_rows):
        e("s_lshl_b32 s7, s%d, 6" % sidx)
        e("v_add_u32 v%d, s7, v0" % dst)
        e("s_mov_b32 s7, 0xAAAB")
        e("v_mul_u32_u24 v%d, s7, v%d" % (t1, dst))
        e("v_lshrrev_b32 v%d, 17, v%d" % (t1, t1))
        e("v_mul_u32_u24 v%d, 3, v%d" % (t2, t1))
        e("v_sub_u32 v%d, v%d, v%d" % (t2, dst, t2))
        e("v_mul_u32_u24 v%d, 1280, v%d" % (t1, t1))
        e("v_lshlrev_b32 v%d, 7, v%d" % (t2, t2))
        e("s_add_u32 s7, s88, %d" % (rowbase_rows * 1280))
        e("v_add3_u32 v%d, v%d, v%d, s7" % (dst, t1, t2))
    NWG = 256 if args.pwg else 240
    g.l(NAME + "_kernel")
    if STAMP: e("s_memtime s[98:99]" if STAMP == 3 else "s_memrealtime s[98:99]")
    e("s_cmp_ge_u32 s2, %d" % NWG)
    e("s_cbranch_scc1 L_end")
    e("v_lshrrev_b32 v1, 6, v0")
    e("s_and_b32 s4, s2, 7")
    e("s_lshr_b32 s5, s2, 3")
    e("v_readfirstlane_b32 s3, v1")
    e("v_and_b32 v0, 63, v0")
    if args.wswap:
        e("s_xor_b32 s3, s3, 8")
    e("s_lshr_b32 s6, s4, 2")
    e("s_mul_i32 s7, s6, 48")
    e("s_add_u32 s8, s0, s7")
    e("s_addc_u32 s9, s1, 0")
    e("s_load_dwordx4 s[28:31], s[8:9], 0")
    e("s_load_dwordx4 s[32:35], s[8:9], 16")
    e("s_load_dwordx4 s[36:39], s[8:9], 32")
    e("s_load_dwordx2 s[24:25], s[0:1], 96")
    if args.cpf:
        e("s_cmp_lg_u32 s3, %d" % (8 if args.wswap else 0))
        e("s_cbranch_scc1 L_nocpf")
        e("s_getpc_b64 s[40:41]")
        g.l("L_pc")
        e("s_sub_u32 s40, s40, L_pc-%s_kernel" % NAME)
        e("s_subb_u32 s41, s41, 0")
        if args.cpf == 1:
            e("s_lshl_b32 s7, s5, 9")
            e("v_lshlrev_b32 v100, 7, v0")
            e("v_add_u32 v100, s7, v100")
            e("v_min_u32 v100, L_end-%s_kernel, v100" % NAME)
            e("s_mov_b64 exec, 15")
            e("global_load_dword v101, v100, s[40:41]")
            e("s_mov_b64 exec, -1")
        else:
            e("s_cmp_ge_u32 s5, 2")
            e("s_cbranch_scc1 L_nocpf")
            e("s_lshl_b32 s7, s5, 13")
            e("v_lshlrev_b32 v100, 7, v0")
            e("v_add_u32 v100, s7, v100")
            e("v_min_u32 v100, L_end-%s_kernel, v100" % NAME)
            e("global_load_dword v101, v100, s[40:41]")
        g.l("L_nocpf")
    if STAMP:
        e("s_load_dwordx2 s[92:93], s[0:1], 112")
        e("s_mov_b32 s94, 0x1000000")
        e("s_mov_b32 s95, 0x20000")
        e("s_lshl_b32 s96, s2, 4")
        e("s_add_u32 s96, s96, s3")
        e("s_lshl_b32 s96, s96, 6")
        e("v_mov_b32 v127, 0")
    e("s_and_b32 s7, s4, 3")
    e("s_mul_i32 s7, s7, 160")
    e("s_lshl_b32 s10, s5, 3")
    e("s_lshl_b32 s11, s5, 4")
    e("s_sub_u32 s11, s11, 320")
    e("s_cmp_ge_u32 s5, 20")
    e("s_cselect_b32 s10, s11, s10")
    e("s_cselect_b32 s89, 1, 0")
    e("s_add_u32 s10, s10, s7")
    e("s_lshl_b32 s88, s7, 1")
    e("s_and_b32 s88, s88, 0xffffff80")
    if args.pwg:
        e("s_cmp_ge_u32 s5, 30")
        e("s_cbranch_scc1 L_pf")
    e("v_lshlrev_b32 v1, 2, v0")
    e("v_and_b32 v1, 124, v1")
    e("v_add_u32 v1, %d, v1" % CTL)
    e("v_mov_b32 v2, 0")
    e("ds_write_b32 v1, v2")
    e("s_cmp_ge_u32 s3, 8")
    e("s_cbranch_scc1 L_mfma")
    mark_io = len(g.lines)

    VL = 1
    VO = 2
    VXL = 3
    VYL = 4
    VA_ = 5; VB_ = 6; VC_ = 7; VD_ = 8
    WP = 10
    W = 18
    K = 34
    V = 48
    T = 56
    XP = 86
    Q = 94
    QF = 102
    e("s_setprio 3")
    e("s_cmp_lg_u32 s89, 0")
    e("s_cselect_b32 s40, 2, 1")
    sel(41, 64, 128)
    sel(42, 0x000F000F, 0x00030003)
    e("s_mov_b32 s43, s42")
    sel(49, XCP_H, XCP_M)
    sel(50, XB + X0OFF + XCP_H + 2040, XB + X0OFF + XCP_M + 4088)
    e("s_cselect_b32 s44, 1, 2")
    e("s_cselect_b32 s45, 3, 1")
    e("v_lshrrev_b32 v%d, s40, v0" % VA_)
    e("v_and_b32 v%d, s45, v0" % VB_)
    e("v_mul_u32_u24 v%d, 5120, v%d" % (VL, VA_))
    e("v_lshlrev_b32 v%d, 3, v%d" % (VC_, VB_))
    e("s_lshl_b32 s7, s10, 1")
    e("v_add3_u32 v%d, v%d, v%d, s7" % (VL, VL, VC_))
    e("v_lshlrev_b32 v%d, 5, v%d" % (VD_, VB_))
    e("s_lshl_b32 s7, s10, 3")
    e("v_add_u32 v%d, s7, v%d" % (VD_, VD_))
    e("s_waitcnt lgkmcnt(0)")
    stamp(0)
    srd(12, 30, 2621440); srd(16, 32, 2621440); srd(20, 28, 2621440); srd(52, 34, 5120)
    if args.order3:
        e("s_cmp_lt_u32 s3, 4")
        e("s_cbranch_scc1 L_nobar1")
        e("s_barrier")
        g.l("L_nobar1")
    elif args.order2:
        e("s_cmp_lt_u32 s3, %d" % args.order2)
        e("s_cbranch_scc1 L_nobar1")
        e("s_setprio 2")
        e("s_barrier")
        g.l("L_nobar1")
    elif not args.kvfirst:
        e("s_barrier")
    e("buffer_load_dwordx4 %s, v%d, s[52:55], 0 offen" % (vr(WP, 4), VD_))
    e("buffer_load_dwordx4 %s, v%d, s[52:55], 0 offen offset:16" % (vr(WP + 4, 4), VD_))
    def rotated(seq, nrot):
        if nrot <= 1:
            for x in seq: e(x)
            return
        lp = g.newlab("L_rot")
        step = len(seq) // nrot
        e("s_and_b32 s7, s5, %d" % (nrot - 1))
        for j in range(1, nrot):
            e("s_cmp_eq_u32 s7, %d" % j)
            e("s_cbranch_scc1 %s_%d" % (lp, j))
        for j in range(nrot):
            if j: g.l("%s_%d" % (lp, j))
            for x in seq[j * step:] + seq[:j * step]: e(x)
            if j < nrot - 1: e("s_branch %s_end" % lp)
        g.l(lp + "_end")
    def issue_kv(chunk_sgpr):
        e("s_mul_i32 s7, s%d, s41" % chunk_sgpr)
        e("s_mul_i32 s7, s7, 1280")
        e("v_add_u32 v%d, s7, v%d" % (VC_, VL))
        e("v_subrev_u32 v%d, 3840, v%d" % (VD_, VC_))
        seq = []
        for r in range(4):
            seq.append("buffer_load_dwordx2 %s, v%d, s[12:15], 0 offen offset:%d%s" % (vr(K + 6 + 2 * r, 2), VC_, 1280 * r, args.kfl))
            seq.append("buffer_load_dwordx2 %s, v%d, s[16:19], 0 offen offset:%d%s" % (vr(V + 2 * r, 2), VC_, 1280 * r, args.vfl))
        rotated(seq, args.rot)
        e("s_mov_b64 exec, s[42:43]")
        for r in range(3):
            e("buffer_load_dwordx2 %s, v%d, s[12:15], 0 offen offset:%d" % (vr(K + 2 * r, 2), VD_, 1280 * r))
        e("s_mov_b64 exec, -1")
    e("s_mov_b32 s46, s3")
    if args.mswap:
        e("s_xor_b32 s7, s3, 4")
        e("s_cmp_eq_u32 s89, 0")
        e("s_cselect_b32 s46, s7, s3")
    issue_kv(46)
    if args.order3:
        e("s_cmp_ge_u32 s3, 4")
        e("s_cbranch_scc1 L_nobar2")
        e("s_barrier")
        g.l("L_nobar2")
    elif args.order2:
        e("s_cmp_ge_u32 s3, %d" % args.order2)
        e("s_cbranch_scc1 L_nobar2")
        e("s_barrier")
        g.l("L_nobar2")
        e("s_setprio 3")
    elif args.kvfirst:
        e("s_barrier")
    stamp(1)
    srd(24, 24, 5242880)
    e("v_mul_u32_u24 v%d, 10240, v%d" % (VO, VA_))
    e("s_mul_i32 s7, s6, 1280")
    e("s_lshl_b32 s11, s10, 1")
    e("s_add_u32 s7, s7, s11")
    e("v_lshlrev_b32 v%d, 3, v%d" % (T, VB_))
    e("v_add3_u32 v%d, v%d, v%d, s7" % (VO, VO, T))
    e("v_and_b32 v%d, 1, v%d" % (T, VB_))
    e("v_mul_u32_u24 v%d, %d, v%d" % (T, XG, T))
    e("v_lshrrev_b32 v%d, 1, v%d" % (T + 1, VB_))
    e("v_mul_u32_u24 v%d, %d, v%d" % (T + 1, XHALF, T + 1))
    e("v_add_u32 v%d, v%d, v%d" % (T, T, T + 1))
    e("v_lshlrev_b32 v%d, 3, v%d" % (T + 1, VA_))
    e("v_sub_u32 v%d, v%d, v%d" % (VXL, T, T + 1))
    e("v_add_u32 v%d, s50, v%d" % (VXL, VXL))
    e("v_lshlrev_b32 v%d, 4, v%d" % (T + 1, VA_))
    e("v_add_u32 v%d, v%d, v%d" % (VYL, T, T + 1))
    e("v_add_u32 v%d, %d, v%d" % (VYL, XB + X0OFF + 64, VYL))
    e("s_mov_b32 s48, 0xffff0000")
    e("s_waitcnt vmcnt(11)")
    for i in range(4):
        e("v_lshlrev_b32 v%d, 16, v%d" % (W + 4 * i + 0, WP + 2 * i))
        e("v_and_b32 v%d, s48, v%d" % (W + 4 * i + 1, WP + 2 * i))
        e("v_lshlrev_b32 v%d, 16, v%d" % (W + 4 * i + 2, WP + 2 * i + 1))
        e("v_and_b32 v%d, s48, v%d" % (W + 4 * i + 3, WP + 2 * i + 1))
    e("s_mov_b32 s47, 0")
    g.l("L_xjob")
    e("s_mul_i32 s7, s46, s41")
    e("s_lshl_b32 s11, s7, 1")
    e("v_subrev_u32 v%d, s11, v%d" % (VA_, VXL))
    e("v_subrev_u32 v%d, s49, v%d" % (VB_, VA_))
    e("v_subrev_u32 v%d, 4, v%d" % (9, VB_))
    e("s_lshr_b32 s7, s7, 8")
    e("s_lshl_b32 s7, s7, 2")
    e("s_add_u32 s51, s7, %d" % CTL)
    if args.hpf:
        e("s_waitcnt vmcnt(3)")
        e("s_cmp_eq_u32 s47, 2")
        e("s_cbranch_scc1 L_w1")
    e("s_waitcnt vmcnt(0)")
    g.l("L_w1")
    if args.ioprio: e("s_setprio 3")
    if STAMP == 1 or STAMP == 3:
        e("s_min_u32 s97, s47, 1"); e("s_lshl_b32 s97, s97, 1"); e("s_add_u32 s97, s97, 2"); stamp("s97")
    e("s_cmp_lg_u32 s89, 0")
    e("s_cbranch_scc1 L_dpp_h")
    for r in range(3):
        for d in range(2):
            e("v_mov_b32_dpp v%d, v%d row_shr:2 row_mask:0xf bank_mask:0xf" % (K + 2 * r + d, K + 2 * (r + 4) + d))
    e("s_branch L_dpp_done")
    g.l("L_dpp_h")
    for r in range(3):
        for d in range(2):
            e("v_mov_b32_dpp v%d, v%d row_shr:4 row_mask:0xf bank_mask:0xf" % (K + 2 * r + d, K + 2 * (r + 4) + d))
    g.l("L_dpp_done")
    for d in range(2):
        for r in (3, 4, 5, 6, 0, 1, 2):
            e("v_lshlrev_b32 v%d, 16, v%d" % (T + r, K + 2 * r + d))
            e("v_and_b32 v%d, s48, v%d" % (T + 7 + r, K + 2 * r + d))
        A = T + 14; U = T + 22
        for h in range(2):
            c = 2 * d + h
            for row in range(4):
                e("v_mul_f32 v%d, v%d, v%d" % (A + h * 4 + row, W + 4 * c + 3, T + 7 * h + row))
            for j in (2, 1, 0):
                for row in range(4):
                    e("v_fmac_f32 v%d, v%d, v%d" % (A + h * 4 + row, W + 4 * c + j, T + 7 * h + row + 3 - j))
        for row in range(4):
            e("v_lshlrev_b32 v%d, 16, v%d" % (U + row, V + 2 * row + d))
            e("v_and_b32 v%d, s48, v%d" % (U + 4 + row, V + 2 * row + d))
        for i in range(8):
            e("v_mul_f32 v%d, v%d, v%d" % (A + i, A + i, U + i))
        for h in range(2):
            c = 2 * d + h
            e("v_cvt_pk_bf16_f32 v%d, v%d, v%d" % (XP + 2 * c, A + h * 4 + 3, A + h * 4 + 2))
            e("v_cvt_pk_bf16_f32 v%d, v%d, v%d" % (XP + 2 * c + 1, A + h * 4 + 1, A + h * 4 + 0))
        for h in range(2):
            c = 2 * d + h
            e("ds_write_b64 v%d, %s offset:%d" % (VA_, vr(XP + 2 * c, 2), c * XCH))
        c = 2 * d
        e("ds_write2st64_b32 v9, v%d, v%d offset0:%d offset1:%d" % (XP + 2 * c, XP + 2 * c + 2, 35 * c, 35 * (c + 1)))
        e("ds_write2st64_b32 v%d, v%d, v%d offset0:%d offset1:%d" % (VB_, XP + 2 * c + 1, XP + 2 * c + 3, 35 * c, 35 * (c + 1)))
    e("v_mov_b32 v%d, s51" % T)
    e("v_mov_b32 v%d, s44" % (T + 1))
    e("s_waitcnt lgkmcnt(0)")
    e("s_mov_b64 exec, 1")
    e("ds_add_u32 v%d, v%d" % (T, T + 1))
    e("s_mov_b64 exec, -1")
    if STAMP == 1 or STAMP == 3:
        e("s_add_u32 s97, s97, 1"); stamp("s97")
    e("s_cmp_lg_u32 s47, 0")
    e("s_cbranch_scc1 L_xdone")
    if args.hack:
        e("s_cmp_lg_u32 s89, 0")
        e("s_cbranch_scc1 L_nohack")
        e("s_mov_b64 exec, 1")
        e("ds_add_u32 v%d, v%d offset:16" % (T, T + 1))
        e("s_mov_b64 exec, -1")
        e("s_branch L_xdone")
        g.l("L_nohack")
    e("s_mov_b32 s47, 1")
    e("s_setprio 2")
    e("s_add_u32 s46, s3, 8")
    issue_kv(46)
    if args.hpf:
        e("s_cmp_eq_u32 s89, 0")
        e("s_cbranch_scc1 L_xjob")
        e("s_cmp_lt_u32 s3, 4")
        e("s_cbranch_scc1 L_xjob")
        e("s_mul_i32 s56, s3, 10")
        e("s_add_u32 s56, s56, s5")
        e("s_sub_u32 s56, s56, 60")
        e("s_mov_b32 s47, 2")
        e("s_cmp_ge_u32 s56, 24")
        e("s_cbranch_scc1 L_hpf_q")
        pf_addr(Q, Q + 1, Q + 2, 56, 1536)
        e("buffer_load_dword v%d, v%d, s[12:15], 0 offen" % (Q + 3, Q))
        e("buffer_load_dword v%d, v%d, s[16:19], 0 offen" % (Q + 4, Q))
        e("buffer_load_dword v%d, v%d, s[16:19], 0 offen" % (Q + 5, Q) if args.hpf == 1 else "s_nop 0")
        e("s_branch L_xjob")
        g.l("L_hpf_q")
        e("s_sub_u32 s56, s56, 24")
        pf_addr(Q, Q + 1, Q + 2, 56, 0)
        e("s_mov_b32 s7, %d" % (1024 // 3 * 1280))
        e("buffer_load_dword v%d, v%d, s[20:23], 0 offen" % (Q + 3, Q))
        e("buffer_load_dword v%d, v%d, s[20:23], s7 offen" % (Q + 4, Q))
        e("s_mov_b32 s7, %d" % (2048 // 3 * 1280))
        e("buffer_load_dword v%d, v%d, s[20:23], s7 offen" % (Q + 5, Q))
    e("s_branch L_xjob")
    g.l("L_xdone")
    e("s_setprio 1")
    e("s_add_u32 s7, s3, 8")
    e("s_cmp_lg_u32 s89, 0")
    e("s_cselect_b32 s46, s3, s7")
    g.l("L_ejob")
    e("s_mul_i32 s56, s46, s41")
    e("s_mul_i32 s7, s56, 1280")
    e("v_add_u32 v%d, s7, v%d" % (VC_, VL))
    rotated(["buffer_load_dwordx2 %s, v%d, s[20:23], 0 offen offset:%d" % (vr(Q + 2 * r, 2), VC_, 1280 * r) for r in range(4)], args.qrot)
    e("s_mul_i32 s7, s56, 2560")
    e("v_add_u32 v%d, s7, v%d" % (VC_, VO))
    e("v_add_u32 v%d, 5120, v%d" % (VD_, VC_))
    e("s_and_b32 s7, s56, 255")
    e("s_lshl_b32 s7, s7, 2")
    e("s_bitcmp1_b32 s56, 8")
    e("s_cselect_b32 s11, s49, 0")
    e("s_add_u32 s7, s7, s11")
    e("s_bitcmp1_b32 s56, 9")
    e("s_cselect_b32 s11, 0, 1024")
    e("s_add_u32 s7, s7, s11")
    e("v_add_u32 v%d, s7, v%d" % (VA_, VYL))
    e("s_lshr_b32 s7, s56, 9")
    e("s_lshl_b32 s7, s7, 2")
    e("s_add_u32 s7, s7, %d" % (CTL + 32))
    e("v_mov_b32 v%d, s7" % VB_)
    e("s_waitcnt vmcnt(0)")
    if args.ioprio: e("s_setprio 3")
    if STAMP == 1 or STAMP == 3:
        e("s_add_u32 s97, s97, 1"); stamp("s97")
    for row in range(4):
        for d in range(2):
            e("v_lshlrev_b32 v%d, 16, v%d" % (QF + 4 * (2 * d) + row, Q + 2 * row + d))
            e("v_and_b32 v%d, s48, v%d" % (QF + 4 * (2 * d + 1) + row, Q + 2 * row + d))
    lp = g.newlab("L_ywait")
    if args.poll1: e("s_mov_b64 exec, 1")
    g.l(lp)
    e("ds_read_b32 v%d, v%d" % (T, VB_))
    e("s_waitcnt lgkmcnt(0)")
    e("v_readfirstlane_b32 s7, v%d" % T)
    e("s_cmp_ge_u32 s7, 8")
    e("s_cbranch_scc1 %s_done" % lp)
    if args.poll1:
        e("s_cmp_lg_u32 s7, 0")
        e("s_cbranch_scc1 %s_s" % lp)
        e("s_sleep %d" % args.ysleep)
        g.l(lp + "_s")
    e("s_sleep 1")
    e("s_branch %s" % lp)
    g.l(lp + "_done")
    if args.poll1: e("s_mov_b64 exec, -1")
    if STAMP == 1 or STAMP == 3:
        e("s_add_u32 s97, s97, 1"); stamp("s97")
    Y = T
    O = T + 16
    for c in range(4):
        e("ds_read_b128 %s, v%d offset:%d" % (vr(Y + 4 * c, 4), VA_, c * XCH))
    for d in range(2):
        e("s_waitcnt lgkmcnt(%d)" % (2 - 2 * d))
        for i in range(8):
            e("v_mul_f32 v%d, v%d, v%d" % (Y + 8 * d + i, Y + 8 * d + i, QF + 8 * d + i))
        for row in range(4):
            e("v_cvt_pk_bf16_f32 v%d, v%d, v%d" % (O + 2 * row + d, Y + 8 * d + row, Y + 8 * d + 4 + row))
    def stores(fl):
        e("buffer_store_dwordx2 %s, v%d, s[24:27], 0 offen%s" % (vr(O, 2), VC_, fl))
        e("buffer_store_dwordx2 %s, v%d, s[24:27], 0 offen offset:2560%s" % (vr(O + 2, 2), VC_, fl))
        e("buffer_store_dwordx2 %s, v%d, s[24:27], 0 offen%s" % (vr(O + 4, 2), VD_, fl))
        e("buffer_store_dwordx2 %s, v%d, s[24:27], 0 offen offset:2560%s" % (vr(O + 6, 2), VD_, fl))
    if args.hst:
        if args.hst1:
            e("s_cmp_lt_u32 s46, 8")
        else:
            e("s_cmp_lg_u32 s89, 0")
        e("s_cbranch_scc1 L_sth")
        stores("")
        e("s_branch L_std")
        g.l("L_sth")
        stores(" " + args.hst)
        g.l("L_std")
    else:
        stores("")
    e("s_cmp_ge_u32 s46, 8")
    e("s_cbranch_scc1 L_io_done")
    e("s_add_u32 s46, s46, 8")
    if args.ioprio: e("s_setprio 1")
    e("s_branch L_ejob")
    g.l("L_io_done")
    if args.wb:
        e("s_lshl_b32 s7, s89, 3")
        e("s_add_u32 s7, s7, s3")
        e("s_cmp_eq_u32 s7, 15")
        e("s_cbranch_scc1 L_dowb")
        if args.wb >= 2:
            e("s_cmp_lg_u32 s7, 3")
            e("s_cbranch_scc1 L_nowb")
            e("s_and_b32 s7, s5, %d" % (args.wbm - 1))
            e("s_cmp_lg_u32 s7, 0")
            e("s_cbranch_scc1 L_nowb")
        else:
            e("s_branch L_nowb")
        g.l("L_dowb")
        e("s_waitcnt vmcnt(0)")
        e("buffer_wbl2 sc1")
        e("s_waitcnt vmcnt(0)")
        g.l("L_nowb")
    stamp_flush()
    e("s_endpgm")

    mark_mf = len(g.lines)
    g.l("L_mfma")
    e("s_sub_u32 s3, s3, 8")
    e("s_add_u32 s7, s10, s3")
    e("s_lshl_b32 s11, s7, 12")
    e("s_lshr_b32 s44, s7, 1")
    e("s_lshl_b32 s44, s44, 2")
    e("s_and_b32 s45, s7, 1")
    e("v_lshlrev_b32 v1, 4, v0")
    e("v_subrev_u32 v2, 4, v1")
    e("s_cmp_lg_u32 s89, 0")
    e("s_cselect_b32 s7, 32768, 0")
    e("s_cselect_b32 s22, 0, 2048")
    sel(23, HCP_H, HCP_M)
    sel(49, XCP_H, XCP_M)
    sel(50, 2 * HCP_H, 2048)
    e("v_add_u32 v3, s22, v1")
    e("v_subrev_u32 v4, 4, v3")
    e("s_waitcnt lgkmcnt(0)")
    stamp(0)
    e("s_add_u32 s12, s36, s11")
    e("s_addc_u32 s13, s37, 0")
    e("s_and_b32 s13, s13, 0xffff")
    e("s_mov_b32 s14, 4096")
    e("s_mov_b32 s15, 0x20000")
    e("s_add_u32 s16, s12, s7")
    e("s_addc_u32 s17, s13, 0")
    e("s_mov_b32 s18, 4096")
    e("s_mov_b32 s19, 0x20000")
    e("s_add_u32 s38, s38, s44")
    e("s_addc_u32 s39, s39, 0")
    e("s_load_dword s40, s[38:39], 0")
    e("s_cmp_lg_u32 s89, 0")
    e("s_cselect_b32 s7, 16, 0")
    e("s_load_dword s41, s[38:39], s7")
    def ipf():
        if not args.ipf: return
        e("s_cmp_ge_u32 s3, %d" % args.ipf)
        e("s_cbranch_scc1 L_noipf")
        e("s_cmp_ge_u32 s5, 24")
        e("s_cbranch_scc1 L_noipf")
        srd(52, 30, 2621440); srd(56, 32, 2621440)
        e("s_mul_i32 s46, s3, 24")
        e("s_add_u32 s46, s46, s5")
        pf_addr(80, 81, 82, 46, 512 * args.ipf0)
        e("buffer_load_dword v83, v80, s[52:55], 0 offen")
        e("buffer_load_dword v84, v80, s[56:59], 0 offen")
        g.l("L_noipf")
    ipf()
    def ipfh():
        if not args.ipfh: return
        e("s_cmp_ge_u32 s3, %d" % args.ipfh)
        e("s_cbranch_scc1 L_noipfh")
        e("s_cmp_eq_u32 s89, 0")
        e("s_cbranch_scc1 L_noipfh")
        srd(52, 30, 2621440); srd(56, 32, 2621440)
        e("s_mul_i32 s46, s3, 10")
        e("s_add_u32 s46, s46, s5")
        e("s_sub_u32 s46, s46, 20")
        pf_addr(80, 81, 82, 46, args.ipfh0)
        e("buffer_load_dword v83, v80, s[52:55], 0 offen")
        e("buffer_load_dword v84, v80, s[56:59], 0 offen")
        g.l("L_noipfh")
    ipfh()
    HD = 48; HM = 64
    order = (0, 1, 2, 3)
    if args.order3:
        e("s_setprio 3")
    elif args.order2:
        e("s_setprio 3")
        e("s_barrier")
    for b in order:
        S = "s[12:15]" if b < 2 else "s[16:19]"
        va = "v1" if b < 2 else "v3"
        e("buffer_load_dwordx4 %s, %s, %s, 0 offen offset:%d%s" % (vr(HD + 4 * b, 4), va, S, 1024 * (b & 1), NH))
    if args.order3:
        e("s_setprio 0")
    elif not args.order2:
        e("s_barrier")
    else:
        e("s_setprio 0")
    e("s_mul_i32 s20, s3, %d" % HSLOT)
    e("s_and_b32 s7, s3, 3")
    e("s_mul_i32 s21, s7, %d" % XCH)
    e("s_lshr_b32 s7, s3, 2")
    e("s_mul_i32 s7, s7, %d" % XG)
    e("s_add_u32 s21, s21, s7")
    e("s_add_u32 s21, s21, %d" % XB)
    for i in range(4):
        e("v_mov_b32 v%d, 0" % (4 + i))
    e("v_and_b32 v3, 31, v0")
    e("v_min_u32 v3, 27, v3")
    e("v_lshlrev_b32 v3, 4, v3")
    e("v_lshrrev_b32 v8, 5, v0")
    e("v_mul_u32_u24 v9, s23, v8")
    e("v_add3_u32 v3, v3, v9, s20")
    e("ds_write_b128 v3, v[4:7]")
    e("v_and_b32 v10, 31, v0")
    e("v_min_u32 v10, 16, v10")
    e("v_lshlrev_b32 v10, 2, v10")
    e("s_add_u32 s7, s49, 4")
    e("v_mul_u32_u24 v9, s7, v8")
    e("v_sub_u32 v10, v10, v9")
    e("s_lshl_b32 s7, s49, 1")
    e("s_add_u32 s7, s7, s21")
    e("s_add_u32 s7, s7, %d" % (X0OFF - 128))
    e("v_add_u32 v10, s7, v10")
    e("ds_write_b32 v10, v4")
    e("s_cmp_eq_u32 s89, 0")
    e("s_cbranch_scc1 L_nopad2")
    e("ds_write_b128 v3, v[4:7] offset:%d" % (2 * HCP_H))
    e("ds_write_b32 v10, v4 offset:%d" % XHALF)
    g.l("L_nopad2")
    VA = 1; VB = 2; VYW = 3
    e("v_add_u32 v40, s20, v1")
    e("v_add_u32 v46, s50, v40")
    e("v_add_u32 v47, s23, v40")
    e("v_add_u32 v76, s23, v46")
    e("v_and_b32 v41, 1, v0")
    e("v_xor_b32 v41, 1, v41")
    e("v_mul_u32_u24 v41, s23, v41")
    e("v_bfe_u32 v42, v0, 1, 3")
    e("v_lshlrev_b32 v42, 6, v42")
    e("v_lshrrev_b32 v43, 4, v0")
    e("v_lshlrev_b32 v44, 4, v43")
    e("v_add3_u32 v41, v41, v42, v44")
    e("v_add_u32 v%d, s20, v41" % VA)
    e("v_and_b32 v41, 1, v0")
    e("s_add_u32 s7, s49, 4")
    e("v_mul_u32_u24 v41, s7, v41")
    e("v_and_b32 v42, 15, v0")
    e("v_lshlrev_b32 v45, 2, v42")
    e("v_sub_u32 v41, v41, v45")
    e("v_add3_u32 v41, v41, v44, s21")
    e("v_add_u32 v%d, %d, v41" % (VB, X0OFF + 56))
    e("v_lshlrev_b32 v41, 8, v43")
    e("v_lshlrev_b32 v45, 3, v42")
    e("v_add3_u32 v41, v41, v45, s21")
    e("v_add_u32 v%d, %d, v41" % (VYW, X0OFF + 64))
    ACC = 8
    for i in range(32):
        e("v_mov_b32 v%d, 0" % (ACC + i))
    e("s_waitcnt lgkmcnt(0)")
    e("s_lshl_b32 s42, s40, 16")
    e("s_and_b32 s40, s40, 0xffff0000")
    e("s_lshl_b32 s43, s41, 16")
    e("s_and_b32 s41, s41, 0xffff0000")
    e("s_cmp_eq_u32 s45, 0")
    e("s_cselect_b32 s40, s42, s40")
    e("s_cselect_b32 s41, s43, s41")
    e("s_cmp_eq_u32 s89, 0")
    e("s_cselect_b32 s41, 0, s41")
    for n, b in enumerate(order):
        d = HD + 4 * b
        o = 68 + 4 * (n & 1)
        if b == 0:
            e("v_mov_b32 v%d, 0" % HM)
        else:
            e("v_readlane_b32 s46, v%d, 63" % (d - 1))
            if b == 2:
                e("s_cmp_eq_u32 s89, 0")
                e("s_cselect_b32 s46, s46, 0")
            else:
                e("s_nop 1")
            e("v_mov_b32 v%d, s46" % (HM + b))
        e("s_waitcnt vmcnt(%d)" % (3 - n))
        e("s_nop 0")
        e("v_mov_b32_dpp v%d, v%d wave_shr:1 row_mask:0xf bank_mask:0xf" % (HM + b, d + 3))
        if b in (0, 2):
            e("s_mov_b64 exec, 1")
            e("v_lshlrev_b32 v77, 16, v%d" % d)
            e("v_and_b32 v78, 0xffff0000, v%d" % d)
            e("v_add_f32 v77, s%d, v77" % (40 + (b >> 1)))
            e("v_cvt_pk_bf16_f32 v%d, v77, v78" % d)
            e("s_mov_b64 exec, -1")
        e("ds_write_b128 %s, %s offset:%d" % ("v40" if b < 2 else "v46", vr(d, 4), 448 + 1024 * (b & 1)))
        e("v_alignbit_b32 v%d, v%d, v%d, 16" % (o + 0, d + 0, HM + b))
        e("v_alignbit_b32 v%d, v%d, v%d, 16" % (o + 1, d + 1, d + 0))
        e("v_alignbit_b32 v%d, v%d, v%d, 16" % (o + 2, d + 2, d + 1))
        e("v_alignbit_b32 v%d, v%d, v%d, 16" % (o + 3, d + 3, d + 2))
        e("ds_write_b128 %s, %s offset:%d" % ("v47" if b < 2 else "v76", vr(o, 4), 448 + 1024 * (b & 1)))
    e("v_mov_b32 v4, %d" % CTL)
    e("v_mov_b32 v5, 1")
    e("s_waitcnt lgkmcnt(0)")
    stamp(1)
    if args.order3: e("s_barrier")
    e("s_cmp_lg_u32 s89, 0")
    e("s_cbranch_scc1 L_mfma_h")

    if args.layout:
        e("s_branch L_mfma_m")
        io = g.lines[mark_io:mark_mf]; mf = g.lines[mark_mf:]
        head = g.lines[:mark_io - 2] + ["    s_cmp_lt_u32 s3, 8", "    s_cbranch_scc1 L_io"]
        g.lines[:] = head + mf + ["L_io:"] + io + ["L_mfma_m:"]
    def wait_flags(blocks):
        lp = g.newlab("L_xwait")
        if args.poll1: e("s_mov_b64 exec, 1")
        g.l(lp)
        lo = blocks[0] & ~1
        n2 = (blocks[-1] - lo) // 2 + 1
        for i in range(n2):
            e("ds_read_b64 v[%d:%d], v4 offset:%d" % (120 + 2 * i, 121 + 2 * i, 4 * lo + 8 * i))
        e("s_waitcnt lgkmcnt(0)")
        r0 = 120 + blocks[0] - lo
        for b in blocks[1:]:
            e("v_and_b32 v%d, v%d, v%d" % (r0, r0, 120 + b - lo))
        e("s_nop 0")
        e("v_readfirstlane_b32 s7, v%d" % r0)
        e("s_bitcmp1_b32 s7, 2")
        e("s_cbranch_scc1 %s_done" % lp)
        e("s_sleep 1")
        e("s_branch %s" % lp)
        g.l(lp + "_done")
        if args.poll1: e("s_mov_b64 exec, -1")

    def front(steps, setbase, nregs, maxsets, waitfn, allA=False):
        if allA:
            nA = sum(1 for st in steps for r in st[0] if r[1] == 'A')
            bsz = 4 * max(sum(1 for r in st[0] if r[1] == 'B') for st in steps)
            nsets = min((nregs - 4 * nA) // bsz, len(steps) + 1)
            amap = {}; r = setbase
            for si, st in enumerate(steps):
                for (key, kind, ar, off) in st[0]:
                    if kind == 'A': amap[key] = r; r += 4
            bbase = r
            def regs(si, reads):
                m = {}; r = bbase + (si % nsets) * bsz
                for (key, kind, ar, off) in reads:
                    if kind == 'A': m[key] = amap[key]
                    else: m[key] = r; r += 4
                return m
        else:
            setsize = 4 * max(len(st[0]) for st in steps)
            nsets = min(nregs // setsize, maxsets, len(steps) + 1)
            def regs(si, reads):
                m = {}; r = setbase + (si % nsets) * setsize
                for (key, kind, ar, off) in reads:
                    m[key] = r; r += 4
                return m
        assert nsets >= 2
        LA = nsets - 1
        issued = []; pre = set()
        def rinstrs(si, kinds="AB"):
            reads = steps[si][0]; m = regs(si, reads); out = []
            for (key, kind, ar, off) in reads:
                if kind not in kinds or (si, key) in pre: continue
                if kind == 'A':
                    out.append(((si, key), "ds_read_b128 %s, v%d offset:%d" % (vr(m[key], 4), ar, off)))
                else:
                    out.append(((si, key), "ds_read_b64 %s, v%d offset:%d" % (vr(m[key], 2), ar, off)))
                    out.append(((si, key), "ds_read_b64 %s, v%d offset:%d" % (vr(m[key] + 2, 2), ar, off + 8)))
            return out
        done_upto = [0]
        def need(keys):
            keys = keys - pre
            if not keys: return
            last = max(i for i, k in enumerate(issued) if k in keys)
            if last < done_upto[0]: return
            n = min(len(issued) - 1 - last, 14)
            e("s_waitcnt lgkmcnt(%d)" % n)
            done_upto[0] = len(issued) - n
        if args.preA:
            for si in range(len(steps) if allA else min(LA, len(steps))):
                l_ = rinstrs(si, "A")
                for k, s_ in l_: e(s_)
                for k, s_ in l_: pre.add(k)
        waitfn()
        for si in range(min(LA, len(steps))):
            for k, s_ in rinstrs(si):
                e(s_); issued.append(k)
        for si, (reads, mf) in enumerate(steps):
            m = regs(si, reads)
            nxt = rinstrs(si + LA) if si + LA < len(steps) else []
            nm = len(mf); pos = 0
            for i, (acc, ka, kb) in enumerate(mf):
                need({(si, ka), (si, kb)})
                e("v_mfma_f32_16x16x32_bf16 %s, %s, %s, %s" % (vr(acc, 4), vr(m[ka], 4), vr(m[kb], 4), vr(acc, 4)))
                tgt = min(len(nxt), (len(nxt) * (i + 1) + nm - 1) // nm)
                while pos < tgt:
                    k, s_ = nxt[pos]; e(s_); issued.append(k); pos += 1

    def mk_steps(qs, rlo, rhi, nblk, aoff, boff, accbase, tag, skip7=(), add7=()):
        steps = []
        for t in range(8):
            qq = [q for q in qs if not (t == 7 and q in skip7)] + (list(add7) if t == 7 else [])
            units = [(p, q) for q in qq for p in range(nblk) if rlo <= p + q <= rhi]
            units.sort(key=lambda u: (u[0], u[1]))
            reads = []; seen = set()
            for (p, q) in units:
                for key in (('B', q, tag, t), ('A', p, tag, t)):
                    if key in seen: continue
                    seen.add(key)
                    if key[0] == 'A': reads.append((key, 'A', VA, aoff + 512 * p + 64 * t))
                    else: reads.append((key, 'B', VB, boff + 512 * (nblk - 1 - q) + 64 * t))
            mf = [(accbase + 4 * (p + q - rlo), ('A', p, tag, t), ('B', q, tag, t)) for (p, q) in units]
            if mf: steps.append((reads, mf))
        return steps
    def merge(steps, maxfr):
        out = []
        for s in steps:
            if out and len(out[-1][0]) + len(s[0]) <= maxfr:
                out[-1] = (out[-1][0] + s[0], out[-1][1] + s[1])
            else:
                out.append(s)
        return out

    def yout(accs, cnt_idx):
        e("s_nop 7")
        for (a, off) in accs:
            e("ds_write_b64 v%d, %s offset:%d" % (VYW, vr(a, 2), off))
            e("ds_write_b64 v%d, %s offset:%d" % (VYW, vr(a + 2, 2), off + 128))
        e("s_waitcnt lgkmcnt(0)")
        e("s_mov_b64 exec, 1")
        e("ds_add_u32 v4, v5 offset:%d" % (32 + 4 * cnt_idx))
        e("s_mov_b64 exec, -1")

    fronts = [[int(c) for c in f] for f in args.mfronts.split(",")]
    sl = 2
    for fi, f in enumerate(fronts):
        if args.mprio: e("s_setprio %s" % args.mp[fi])
        def wf(f=f, sl=sl):
            wait_flags(f); stamp(sl)
        sl += 1
        before = set(q for ff in fronts[:fi] for q in ff); now = before | set(f)
        skip7 = tuple(q for q in f if q > 0 and (q - 1) not in now)
        add7 = tuple(q + 1 for q in f if (q + 1) in before)
        front(mk_steps(f, 4, 7, 8, 0, 0, ACC, 0, skip7=skip7, add7=add7), 24, 96, args.lastsets if fi == len(fronts) - 1 else args.maxsets, wf, allA=(args.preA >= 2 and fi == len(fronts) - 1))
        if set(range(6)) <= now and not set(range(6)) <= before:
            yout([(ACC, 1024), (ACC + 4, 1024 + XCP_M)], 2)
        if fi == len(fronts) - 1:
            yout([(ACC + 8, 0), (ACC + 12, XCP_M)], 3)
        stamp(sl); sl += 1
    stamp_flush()
    e("s_endpgm")

    g.l("L_mfma_h")
    hfronts = [[int(c) for c in f] for f in args.hfronts.split(",")]
    sl = 2
    for fi, f in enumerate(hfronts):
        if args.mprio: e("s_setprio %s" % args.hp[fi])
        def wf(f=f, sl=sl):
            wait_flags(f); stamp(sl)
        sl += 1
        s0 = mk_steps(f, 0, 3, 4, 0, 0, ACC, 0)
        s1 = mk_steps(f, 0, 3, 4, 2 * HCP_H, XHALF, ACC + 16, 1)
        steps = []
        for a, b in zip(s0, s1): steps += [a, b]
        front(steps, 40, 80, args.lastsets if fi == len(hfronts) - 1 else args.maxsets, wf)
        if 1 in f:
            yout([(ACC, 1024), (ACC + 4, 1024 + XCP_H), (ACC + 16, XHALF + 1024), (ACC + 20, XHALF + 1024 + XCP_H)], 0)
        if 3 in f:
            yout([(ACC + 8, 0), (ACC + 12, XCP_H), (ACC + 24, XHALF), (ACC + 28, XHALF + XCP_H)], 1)
        stamp(sl); sl += 1
    stamp_flush()
    e("s_endpgm")

    if args.pwg:
        g.l("L_pf")
        e("s_waitcnt lgkmcnt(0)")
        srd(12, 30, 2621440); srd(16, 32, 2621440); srd(20, 28, 2621440)
        e("s_lshl_b32 s46, s3, 1")
        e("s_add_u32 s46, s46, s5")
        e("s_sub_u32 s46, s46, 30")
        pf_addr(8, 9, 10, 46, 0)
        n = 20
        for item in args.pprog.split(","):
            t = {"k": "s[12:15]", "v": "s[16:19]", "q": "s[20:23]"}[item[0]]
            row = int(item[1:])
            e("s_mov_b32 s7, %d" % (row * 1280))
            e("buffer_load_dword v%d, v8, %s, s7 offen" % (n, t)); n += 1
            e("s_barrier")
        e("s_waitcnt vmcnt(0)")
    g.l("L_end")
    e("s_endpgm")

    out = HEADER
    out += "; @launch grid=(%d,1,1) block=(1024,1,1) lds=%d\n" % (NWG, LDS_BYTES)
    out += '.amdgcn_target "amdgcn-amd-amdhsa--gfx950"\n.text\n.globl %s_kernel\n.p2align 8\n.type %s_kernel,@function\n' % (NAME, NAME)
    out += "\n".join(g.lines) + "\n"
    out += '''.section .rodata,"a"
.p2align 6
.amdhsa_kernel %s_kernel
  .amdhsa_next_free_vgpr 128
  .amdhsa_next_free_sgpr 102
  .amdhsa_accum_offset 128
  .amdhsa_group_segment_fixed_size 0
  .amdhsa_kernarg_size 120
  .amdhsa_user_sgpr_count 2
  .amdhsa_user_sgpr_kernarg_segment_ptr 1
  .amdhsa_system_sgpr_workgroup_id_x 1
  .amdhsa_float_denorm_mode_32 3
.end_amdhsa_kernel
''' % NAME
    return out

if __name__ == "__main__":
    ap = argparse.ArgumentParser()
    ap.add_argument("-o", default="cdna_kernels/%s.s" % NAME)
    ap.add_argument("--pwg", type=int, default=1)
    ap.add_argument("--hpf", type=int, default=1)
    ap.add_argument("--kvfirst", type=int, default=0)
    ap.add_argument("--ipf", type=int, default=0)
    ap.add_argument("--kfl", default="")
    ap.add_argument("--vfl", default="")
    ap.add_argument("--mswap", type=int, default=0)
    ap.add_argument("--hst", default="")
    ap.add_argument("--hst1", type=int, default=0)
    ap.add_argument("--wb", type=int, default=0)
    ap.add_argument("--wbm", type=int, default=4)
    ap.add_argument("--order3", type=int, default=1)
    ap.add_argument("--layout", type=int, default=1)
    ap.add_argument("--poll1", type=int, default=1)
    ap.add_argument("--ysleep", type=int, default=4)
    ap.add_argument("--hack", type=int, default=0)
    ap.add_argument("--rot", type=int, default=8)
    ap.add_argument("--qrot", type=int, default=1)
    ap.add_argument("--preA", type=int, default=2)
    ap.add_argument("--cpf", type=int, default=0)
    ap.add_argument("--ipfh", type=int, default=0)
    ap.add_argument("--ipfh0", type=int, default=512)
    ap.add_argument("--wswap", type=int, default=1)
    ap.add_argument("--ioprio", type=int, default=1)
    ap.add_argument("--mp", default="2210")
    ap.add_argument("--hp", default="10")
    ap.add_argument("--order2", type=int, default=0)
    ap.add_argument("--lastsets", type=int, default=2)
    ap.add_argument("--ipf0", type=int, default=1)
    ap.add_argument("--pprog", default="k1024,v1024,q1024,q1706")
    ap.add_argument("--stamp", type=int, default=0)
    ap.add_argument("--nth", type=int, default=0)
    ap.add_argument("--horder", type=int, default=0)
    ap.add_argument("--maxsets", type=int, default=2)
    ap.add_argument("--mprio", type=int, default=1)
    ap.add_argument("--mfronts", default="01,23,45,67")
    ap.add_argument("--hfronts", default="01,23")
    a = ap.parse_args()
    open(a.o, "w").write(build(a))
    print("wrote", a.o, "LDS", LDS_BYTES)
```

```python
import sys, argparse

NAME = "concat_heads__ssm_conv_h3__ssm_conv_h3__prompt"
HEADER = open("cdna_kernels/%s.s.ref" % NAME).read().split("; Override launch geometry")[0]

HCP_M = 4576; HCP_H = 2528
HSLOT = 4 * HCP_H
XB = 8 * HSLOT
XCH = 8960
XG = 4 * XCH + 64
XHALF = 4384
XCP_M = 4224; XCP_H = 2176
X0OFF = 16
CTL = XB + 8 * XCH + 128
LDS_BYTES = CTL + 128

DOC = """;
"""

class Gen:
    def __init__(self):
        self.lines = []; self.lab = 0
    def e(self, s): self.lines.append("    " + s)
    def l(self, s): self.lines.append(s + ":")
    def newlab(self, p="L"):
        self.lab += 1
        return "%s_%d" % (p, self.lab)

def vr(b, n=1):
    return "v%d" % b if n == 1 else "v[%d:%d]" % (b, b + n - 1)

def build(args):
    g = Gen(); e = g.e
    STAMP = args.stamp
    NH = " nt" if args.nth else ""
    def stamp(slot):
        if not STAMP: return
        if STAMP == 2 and slot != 0: return
        if slot == 0:
            e("v_writelane_b32 v127, s98, 0"); return
        e("s_memtime s[90:91]" if STAMP == 3 else "s_memrealtime s[90:91]")
        e("s_waitcnt lgkmcnt(0)")
        if isinstance(slot, str):
            e("s_mov_b32 m0, %s" % slot); e("s_nop 0")
            e("v_writelane_b32 v127, s90, m0")
        else:
            e("v_writelane_b32 v127, s90, %s" % slot)
    def stamp_flush():
        if not STAMP: return
        e("s_waitcnt vmcnt(0)")
        e("s_memtime s[90:91]" if STAMP == 3 else "s_memrealtime s[90:91]")
        e("s_waitcnt lgkmcnt(0)")
        e("v_writelane_b32 v127, s90, 15")
        e("v_lshlrev_b32 v126, 2, v0")
        e("v_add_u32 v126, s96, v126")
        e("s_mov_b64 exec, 0xffff")
        e("buffer_store_dword v127, v126, s[92:95], 0 offen")
    def srd(d, p, n):
        if d != p: e("s_mov_b32 s%d, s%d" % (d, p))
        e("s_and_b32 s%d, s%d, 0xffff" % (d + 1, p + 1))
        e("s_mov_b32 s%d, %d" % (d + 2, n))
        e("s_mov_b32 s%d, 0x20000" % (d + 3))
    def sel(d, a, b):
        e("s_mov_b32 s%d, %d" % (d, b))
        e("s_cmov_b32 s%d, %d" % (d, a))

    def pf_addr(dst, t1, t2, sidx, rowbase_rows):
        e("s_lshl_b32 s7, s%d, 6" % sidx)
        e("v_add_u32 v%d, s7, v0" % dst)
        e("s_mov_b32 s7, 0xAAAB")
        e("v_mul_u32_u24 v%d, s7, v%d" % (t1, dst))
        e("v_lshrrev_b32 v%d, 17, v%d" % (t1, t1))
        e("v_mul_u32_u24 v%d, 3, v%d" % (t2, t1))
        e("v_sub_u32 v%d, v%d, v%d" % (t2, dst, t2))
        e("v_mul_u32_u24 v%d, 1280, v%d" % (t1, t1))
        e("v_lshlrev_b32 v%d, 7, v%d" % (t2, t2))
        e("s_add_u32 s7, s88, %d" % (rowbase_rows * 1280))
        e("v_add3_u32 v%d, v%d, v%d, s7" % (dst, t1, t2))
    NWG = 256 if args.pwg else 240
    g.l(NAME + "_kernel")
    if STAMP: e("s_memtime s[98:99]" if STAMP == 3 else "s_memrealtime s[98:99]")
    e("s_cmp_ge_u32 s2, %d" % NWG)
    e("s_cbranch_scc1 L_end")
    e("v_lshrrev_b32 v1, 6, v0")
    e("s_and_b32 s4, s2, 7")
    e("s_lshr_b32 s5, s2, 3")
    e("v_readfirstlane_b32 s3, v1")
    e("v_and_b32 v0, 63, v0")
    if args.wswap:
        e("s_xor_b32 s3, s3, 8")
    e("s_lshr_b32 s6, s4, 2")
    e("s_mul_i32 s7, s6, 48")
    e("s_add_u32 s8, s0, s7")
    e("s_addc_u32 s9, s1, 0")
    e("s_load_dwordx4 s[28:31], s[8:9], 0")
    e("s_load_dwordx4 s[32:35], s[8:9], 16")
    e("s_load_dwordx4 s[36:39], s[8:9], 32")
    e("s_load_dwordx2 s[24:25], s[0:1], 96")
    if args.cpf:
        e("s_cmp_lg_u32 s3, %d" % (8 if args.wswap else 0))
        e("s_cbranch_scc1 L_nocpf")
        e("s_getpc_b64 s[40:41]")
        g.l("L_pc")
        e("s_sub_u32 s40, s40, L_pc-%s_kernel" % NAME)
        e("s_subb_u32 s41, s41, 0")
        if args.cpf == 1:
            e("s_lshl_b32 s7, s5, 9")
            e("v_lshlrev_b32 v100, 7, v0")
            e("v_add_u32 v100, s7, v100")
            e("v_min_u32 v100, L_end-%s_kernel, v100" % NAME)
            e("s_mov_b64 exec, 15")
            e("global_load_dword v101, v100, s[40:41]")
            e("s_mov_b64 exec, -1")
        else:
            e("s_cmp_ge_u32 s5, 2")
            e("s_cbranch_scc1 L_nocpf")
            e("s_lshl_b32 s7, s5, 13")
            e("v_lshlrev_b32 v100, 7, v0")
            e("v_add_u32 v100, s7, v100")
            e("v_min_u32 v100, L_end-%s_kernel, v100" % NAME)
            e("global_load_dword v101, v100, s[40:41]")
        g.l("L_nocpf")
    if STAMP:
        e("s_load_dwordx2 s[92:93], s[0:1], 112")
        e("s_mov_b32 s94, 0x1000000")
        e("s_mov_b32 s95, 0x20000")
        e("s_lshl_b32 s96, s2, 4")
        e("s_add_u32 s96, s96, s3")
        e("s_lshl_b32 s96, s96, 6")
        e("v_mov_b32 v127, 0")
    e("s_and_b32 s7, s4, 3")
    e("s_mul_i32 s7, s7, 160")
    e("s_lshl_b32 s10, s5, 3")
    e("s_lshl_b32 s11, s5, 4")
    e("s_sub_u32 s11, s11, 320")
    e("s_cmp_ge_u32 s5, 20")
    e("s_cselect_b32 s10, s11, s10")
    e("s_cselect_b32 s89, 1, 0")
    e("s_add_u32 s10, s10, s7")
    e("s_lshl_b32 s88, s7, 1")
    e("s_and_b32 s88, s88, 0xffffff80")
    if args.pwg:
        e("s_cmp_ge_u32 s5, 30")
        e("s_cbranch_scc1 L_pf")
    e("v_lshlrev_b32 v1, 2, v0")
    e("v_and_b32 v1, 124, v1")
    e("v_add_u32 v1, %d, v1" % CTL)
    e("v_mov_b32 v2, 0")
    e("ds_write_b32 v1, v2")
    e("s_cmp_ge_u32 s3, 8")
    e("s_cbranch_scc1 L_mfma")
    mark_io = len(g.lines)

    VL = 1
    VO = 2
    VXL = 3
    VYL = 4
    VA_ = 5; VB_ = 6; VC_ = 7; VD_ = 8
    WP = 10
    W = 18
    K = 34
    V = 48
    T = 56
    XP = 86
    Q = 94
    QF = 102
    e("s_setprio 3")
    e("s_cmp_lg_u32 s89, 0")
    e("s_cselect_b32 s40, 2, 1")
    sel(41, 64, 128)
    sel(42, 0x000F000F, 0x00030003)
    e("s_mov_b32 s43, s42")
    sel(49, XCP_H, XCP_M)
    sel(50, XB + X0OFF + XCP_H + 2040, XB + X0OFF + XCP_M + 4088)
    e("s_cselect_b32 s44, 1, 2")
    e("s_cselect_b32 s45, 3, 1")
    e("v_lshrrev_b32 v%d, s40, v0" % VA_)
    e("v_and_b32 v%d, s45, v0" % VB_)
    e("v_mul_u32_u24 v%d, 5120, v%d" % (VL, VA_))
    e("v_lshlrev_b32 v%d, 3, v%d" % (VC_, VB_))
    e("s_lshl_b32 s7, s10, 1")
    e("v_add3_u32 v%d, v%d, v%d, s7" % (VL, VL, VC_))
    e("v_lshlrev_b32 v%d, 5, v%d" % (VD_, VB_))
    e("s_lshl_b32 s7, s10, 3")
    e("v_add_u32 v%d, s7, v%d" % (VD_, VD_))
    e("s_waitcnt lgkmcnt(0)")
    stamp(0)
    srd(12, 30, 2621440); srd(16, 32, 2621440); srd(20, 28, 2621440); srd(52, 34, 5120)
    if args.order3:
        e("s_cmp_lt_u32 s3, 4")
        e("s_cbranch_scc1 L_nobar1")
        e("s_barrier")
        g.l("L_nobar1")
    elif args.order2:
        e("s_cmp_lt_u32 s3, %d" % args.order2)
        e("s_cbranch_scc1 L_nobar1")
        e("s_setprio 2")
        e("s_barrier")
        g.l("L_nobar1")
    elif not args.kvfirst:
        e("s_barrier")
    e("buffer_load_dwordx4 %s, v%d, s[52:55], 0 offen" % (vr(WP, 4), VD_))
    e("buffer_load_dwordx4 %s, v%d, s[52:55], 0 offen offset:16" % (vr(WP + 4, 4), VD_))
    def rotated(seq, nrot):
        if nrot <= 1:
            for x in seq: e(x)
            return
        lp = g.newlab("L_rot")
        step = len(seq) // nrot
        e("s_and_b32 s7, s5, %d" % (nrot - 1))
        for j in range(1, nrot):
            e("s_cmp_eq_u32 s7, %d" % j)
            e("s_cbranch_scc1 %s_%d" % (lp, j))
        for j in range(nrot):
            if j: g.l("%s_%d" % (lp, j))
            for x in seq[j * step:] + seq[:j * step]: e(x)
            if j < nrot - 1: e("s_branch %s_end" % lp)
        g.l(lp + "_end")
    def issue_kv(chunk_sgpr):
        e("s_mul_i32 s7, s%d, s41" % chunk_sgpr)
        e("s_mul_i32 s7, s7, 1280")
        e("v_add_u32 v%d, s7, v%d" % (VC_, VL))
        e("v_subrev_u32 v%d, 3840, v%d" % (VD_, VC_))
        seq = []
        for r in range(4):
            seq.append("buffer_load_dwordx2 %s, v%d, s[12:15], 0 offen offset:%d%s" % (vr(K + 6 + 2 * r, 2), VC_, 1280 * r, args.kfl))
            seq.append("buffer_load_dwordx2 %s, v%d, s[16:19], 0 offen offset:%d%s" % (vr(V + 2 * r, 2), VC_, 1280 * r, args.vfl))
        rotated(seq, args.rot)
        e("s_mov_b64 exec, s[42:43]")
        for r in range(3):
            e("buffer_load_dwordx2 %s, v%d, s[12:15], 0 offen offset:%d" % (vr(K + 2 * r, 2), VD_, 1280 * r))
        e("s_mov_b64 exec, -1")
    e("s_mov_b32 s46, s3")
    if args.mswap:
        e("s_xor_b32 s7, s3, 4")
        e("s_cmp_eq_u32 s89, 0")
        e("s_cselect_b32 s46, s7, s3")
    issue_kv(46)
    if args.order3:
        e("s_cmp_ge_u32 s3, 4")
        e("s_cbranch_scc1 L_nobar2")
        e("s_barrier")
        g.l("L_nobar2")
    elif args.order2:
        e("s_cmp_ge_u32 s3, %d" % args.order2)
        e("s_cbranch_scc1 L_nobar2")
        e("s_barrier")
        g.l("L_nobar2")
        e("s_setprio 3")
    elif args.kvfirst:
        e("s_barrier")
    e("s_mov_b32 s58, 0")
    if args.hpf0:
        e("s_cmp_eq_u32 s89, 0")
        e("s_cbranch_scc1 L_nohpf0")
        e("s_cmp_lt_u32 s3, %d" % args.hpf0w)
        e("s_cbranch_scc1 L_nohpf0")
        e("s_sub_u32 s56, s3, %d" % args.hpf0w)
        e("s_mul_i32 s56, s56, 10")
        e("s_add_u32 s56, s56, s5")
        e("s_sub_u32 s56, s56, 20")
        e("s_cmp_ge_u32 s56, %d" % args.hpf0)
        e("s_cbranch_scc1 L_nohpf0")
        pf_addr(Q, Q + 1, Q + 2, 56, args.hpf0r)
        e("buffer_load_dword v%d, v%d, s[12:15], 0 offen" % (Q + 3, Q))
        e("buffer_load_dword v%d, v%d, s[16:19], 0 offen" % (Q + 4, Q))
        e("buffer_load_dword v%d, v%d, s[16:19], 0 offen" % (Q + 5, Q))
        e("s_mov_b32 s58, 2")
        g.l("L_nohpf0")
    stamp(1)
    srd(24, 24, 5242880)
    e("v_mul_u32_u24 v%d, 10240, v%d" % (VO, VA_))
    e("s_mul_i32 s7, s6, 1280")
    e("s_lshl_b32 s11, s10, 1")
    e("s_add_u32 s7, s7, s11")
    e("v_lshlrev_b32 v%d, 3, v%d" % (T, VB_))
    e("v_add3_u32 v%d, v%d, v%d, s7" % (VO, VO, T))
    e("v_and_b32 v%d, 1, v%d" % (T, VB_))
    e("v_mul_u32_u24 v%d, %d, v%d" % (T, XG, T))
    e("v_lshrrev_b32 v%d, 1, v%d" % (T + 1, VB_))
    e("v_mul_u32_u24 v%d, %d, v%d" % (T + 1, XHALF, T + 1))
    e("v_add_u32 v%d, v%d, v%d" % (T, T, T + 1))
    e("v_lshlrev_b32 v%d, 3, v%d" % (T + 1, VA_))
    e("v_sub_u32 v%d, v%d, v%d" % (VXL, T, T + 1))
    e("v_add_u32 v%d, s50, v%d" % (VXL, VXL))
    e("v_lshlrev_b32 v%d, 4, v%d" % (T + 1, VA_))
    e("v_add_u32 v%d, v%d, v%d" % (VYL, T, T + 1))
    e("v_add_u32 v%d, %d, v%d" % (VYL, XB + X0OFF + 64, VYL))
    e("s_mov_b32 s48, 0xffff0000")
    e("s_waitcnt vmcnt(11)")
    for i in range(4):
        e("v_lshlrev_b32 v%d, 16, v%d" % (W + 4 * i + 0, WP + 2 * i))
        e("v_and_b32 v%d, s48, v%d" % (W + 4 * i + 1, WP + 2 * i))
        e("v_lshlrev_b32 v%d, 16, v%d" % (W + 4 * i + 2, WP + 2 * i + 1))
        e("v_and_b32 v%d, s48, v%d" % (W + 4 * i + 3, WP + 2 * i + 1))
    e("s_mov_b32 s47, 0")
    g.l("L_xjob")
    e("s_mul_i32 s7, s46, s41")
    e("s_lshl_b32 s11, s7, 1")
    e("v_subrev_u32 v%d, s11, v%d" % (VA_, VXL))
    e("v_subrev_u32 v%d, s49, v%d" % (VB_, VA_))
    e("v_subrev_u32 v%d, 4, v%d" % (9, VB_))
    e("s_lshr_b32 s7, s7, 8")
    e("s_lshl_b32 s7, s7, 2")
    e("s_add_u32 s51, s7, %d" % CTL)
    if args.hpf:
        e("s_waitcnt vmcnt(3)")
        e("s_or_b32 s7, s47, s58")
        e("s_mov_b32 s58, 0")
        e("s_cmp_eq_u32 s7, 2")
        e("s_cbranch_scc1 L_w1")
    e("s_waitcnt vmcnt(0)")
    g.l("L_w1")
    if args.ioprio: e("s_setprio 3")
    if STAMP == 1 or STAMP == 3:
        e("s_min_u32 s97, s47, 1"); e("s_lshl_b32 s97, s97, 1"); e("s_add_u32 s97, s97, 2"); stamp("s97")
    e("s_cmp_lg_u32 s89, 0")
    e("s_cbranch_scc1 L_dpp_h")
    for r in range(3):
        for d in range(2):
            e("v_mov_b32_dpp v%d, v%d row_shr:2 row_mask:0xf bank_mask:0xf" % (K + 2 * r + d, K + 2 * (r + 4) + d))
    e("s_branch L_dpp_done")
    g.l("L_dpp_h")
    for r in range(3):
        for d in range(2):
            e("v_mov_b32_dpp v%d, v%d row_shr:4 row_mask:0xf bank_mask:0xf" % (K + 2 * r + d, K + 2 * (r + 4) + d))
    g.l("L_dpp_done")
    for d in range(2):
        for r in (3, 4, 5, 6, 0, 1, 2):
            e("v_lshlrev_b32 v%d, 16, v%d" % (T + r, K + 2 * r + d))
            e("v_and_b32 v%d, s48, v%d" % (T + 7 + r, K + 2 * r + d))
        A = T + 14; U = T + 22
        for h in range(2):
            c = 2 * d + h
            for row in range(4):
                e("v_mul_f32 v%d, v%d, v%d" % (A + h * 4 + row, W + 4 * c + 3, T + 7 * h + row))
            for j in (2, 1, 0):
                for row in range(4):
                    e("v_fmac_f32 v%d, v%d, v%d" % (A + h * 4 + row, W + 4 * c + j, T + 7 * h + row + 3 - j))
        for row in range(4):
            e("v_lshlrev_b32 v%d, 16, v%d" % (U + row, V + 2 * row + d))
            e("v_and_b32 v%d, s48, v%d" % (U + 4 + row, V + 2 * row + d))
        for i in range(8):
            e("v_mul_f32 v%d, v%d, v%d" % (A + i, A + i, U + i))
        for h in range(2):
            c = 2 * d + h
            e("v_cvt_pk_bf16_f32 v%d, v%d, v%d" % (XP + 2 * c, A + h * 4 + 3, A + h * 4 + 2))
            e("v_cvt_pk_bf16_f32 v%d, v%d, v%d" % (XP + 2 * c + 1, A + h * 4 + 1, A + h * 4 + 0))
        for h in range(2):
            c = 2 * d + h
            e("ds_write_b64 v%d, %s offset:%d" % (VA_, vr(XP + 2 * c, 2), c * XCH))
        c = 2 * d
        e("ds_write2st64_b32 v9, v%d, v%d offset0:%d offset1:%d" % (XP + 2 * c, XP + 2 * c + 2, 35 * c, 35 * (c + 1)))
        e("ds_write2st64_b32 v%d, v%d, v%d offset0:%d offset1:%d" % (VB_, XP + 2 * c + 1, XP + 2 * c + 3, 35 * c, 35 * (c + 1)))
    e("v_mov_b32 v%d, s51" % T)
    e("v_mov_b32 v%d, s44" % (T + 1))
    e("s_waitcnt lgkmcnt(0)")
    e("s_mov_b64 exec, 1")
    e("ds_add_u32 v%d, v%d" % (T, T + 1))
    e("s_mov_b64 exec, -1")
    if args.wake:
        e("s_waitcnt lgkmcnt(0)")
        e("s_wakeup")
    if STAMP == 1 or STAMP == 3:
        e("s_add_u32 s97, s97, 1"); stamp("s97")
    e("s_cmp_lg_u32 s47, 0")
    e("s_cbranch_scc1 L_xdone")
    if args.hack:
        e("s_cmp_lg_u32 s89, 0")
        e("s_cbranch_scc1 L_nohack")
        e("s_mov_b64 exec, 1")
        e("ds_add_u32 v%d, v%d offset:16" % (T, T + 1))
        e("s_mov_b64 exec, -1")
        e("s_branch L_xdone")
        g.l("L_nohack")
    e("s_mov_b32 s47, 1")
    e("s_setprio 2")
    e("s_add_u32 s46, s3, 8")
    issue_kv(46)
    if args.hpf:
        e("s_cmp_eq_u32 s89, 0")
        e("s_cbranch_scc1 L_xjob")
        e("s_cmp_lt_u32 s3, 4")
        e("s_cbranch_scc1 L_xjob")
        e("s_mul_i32 s56, s3, 10")
        e("s_add_u32 s56, s56, s5")
        e("s_sub_u32 s56, s56, 60")
        e("s_mov_b32 s47, 2")
        e("s_cmp_ge_u32 s56, 24")
        e("s_cbranch_scc1 L_hpf_q")
        pf_addr(Q, Q + 1, Q + 2, 56, 1536)
        e("buffer_load_dword v%d, v%d, s[12:15], 0 offen" % (Q + 3, Q))
        e("buffer_load_dword v%d, v%d, s[16:19], 0 offen" % (Q + 4, Q))
        e("buffer_load_dword v%d, v%d, s[16:19], 0 offen" % (Q + 5, Q) if args.hpf == 1 else "s_nop 0")
        e("s_branch L_xjob")
        g.l("L_hpf_q")
        e("s_sub_u32 s56, s56, 24")
        pf_addr(Q, Q + 1, Q + 2, 56, 0)
        e("s_mov_b32 s7, %d" % (1024 // 3 * 1280))
        e("buffer_load_dword v%d, v%d, s[20:23], 0 offen" % (Q + 3, Q))
        e("buffer_load_dword v%d, v%d, s[20:23], s7 offen" % (Q + 4, Q))
        e("s_mov_b32 s7, %d" % (2048 // 3 * 1280))
        e("buffer_load_dword v%d, v%d, s[20:23], s7 offen" % (Q + 5, Q))
    e("s_branch L_xjob")
    g.l("L_xdone")
    e("s_setprio 1")
    e("s_add_u32 s7, s3, 8")
    e("s_cmp_lg_u32 s89, 0")
    e("s_cselect_b32 s46, s3, s7")
    g.l("L_ejob")
    e("s_mul_i32 s56, s46, s41")
    e("s_mul_i32 s7, s56, 1280")
    e("v_add_u32 v%d, s7, v%d" % (VC_, VL))
    rotated(["buffer_load_dwordx2 %s, v%d, s[20:23], 0 offen offset:%d" % (vr(Q + 2 * r, 2), VC_, 1280 * r) for r in range(4)], args.qrot)
    e("s_mul_i32 s7, s56, 2560")
    e("v_add_u32 v%d, s7, v%d" % (VC_, VO))
    e("v_add_u32 v%d, 5120, v%d" % (VD_, VC_))
    e("s_and_b32 s7, s56, 255")
    e("s_lshl_b32 s7, s7, 2")
    e("s_bitcmp1_b32 s56, 8")
    e("s_cselect_b32 s11, s49, 0")
    e("s_add_u32 s7, s7, s11")
    e("s_bitcmp1_b32 s56, 9")
    e("s_cselect_b32 s11, 0, 1024")
    e("s_add_u32 s7, s7, s11")
    e("v_add_u32 v%d, s7, v%d" % (VA_, VYL))
    e("s_lshr_b32 s7, s56, 9")
    e("s_lshl_b32 s7, s7, 2")
    e("s_add_u32 s7, s7, %d" % (CTL + 32))
    e("v_mov_b32 v%d, s7" % VB_)
    e("s_waitcnt vmcnt(0)")
    if args.ioprio: e("s_setprio 3")
    if STAMP == 1 or STAMP == 3:
        e("s_add_u32 s97, s97, 1"); stamp("s97")
    for row in range(4):
        for d in range(2):
            e("v_lshlrev_b32 v%d, 16, v%d" % (QF + 4 * (2 * d) + row, Q + 2 * row + d))
            e("v_and_b32 v%d, s48, v%d" % (QF + 4 * (2 * d + 1) + row, Q + 2 * row + d))
    lp = g.newlab("L_ywait")
    if args.poll1: e("s_mov_b64 exec, 1")
    g.l(lp)
    e("ds_read_b32 v%d, v%d" % (T, VB_))
    e("s_waitcnt lgkmcnt(0)")
    e("v_readfirstlane_b32 s7, v%d" % T)
    e("s_cmp_ge_u32 s7, 8")
    e("s_cbranch_scc1 %s_done" % lp)
    if args.poll1:
        e("s_cmp_lg_u32 s7, 0")
        e("s_cbranch_scc1 %s_s" % lp)
        e("s_sleep %d" % args.ysleep)
        g.l(lp + "_s")
    e("s_sleep %d" % args.ysleep2)
    e("s_branch %s" % lp)
    g.l(lp + "_done")
    if args.poll1: e("s_mov_b64 exec, -1")
    if STAMP == 1 or STAMP == 3:
        e("s_add_u32 s97, s97, 1"); stamp("s97")
    Y = T
    O = T + 16
    for c in range(4):
        e("ds_read_b128 %s, v%d offset:%d" % (vr(Y + 4 * c, 4), VA_, c * XCH))
    for d in range(2):
        e("s_waitcnt lgkmcnt(%d)" % (2 - 2 * d))
        for i in range(8):
            e("v_mul_f32 v%d, v%d, v%d" % (Y + 8 * d + i, Y + 8 * d + i, QF + 8 * d + i))
        for row in range(4):
            e("v_cvt_pk_bf16_f32 v%d, v%d, v%d" % (O + 2 * row + d, Y + 8 * d + row, Y + 8 * d + 4 + row))
    def stores(fl):
        e("buffer_store_dwordx2 %s, v%d, s[24:27], 0 offen%s" % (vr(O, 2), VC_, fl))
        e("buffer_store_dwordx2 %s, v%d, s[24:27], 0 offen offset:2560%s" % (vr(O + 2, 2), VC_, fl))
        e("buffer_store_dwordx2 %s, v%d, s[24:27], 0 offen%s" % (vr(O + 4, 2), VD_, fl))
        e("buffer_store_dwordx2 %s, v%d, s[24:27], 0 offen offset:2560%s" % (vr(O + 6, 2), VD_, fl))
    if args.hst:
        if args.hst1:
            e("s_cmp_lt_u32 s46, 8")
        else:
            e("s_cmp_lg_u32 s89, 0")
        e("s_cbranch_scc1 L_sth")
        stores("")
        e("s_branch L_std")
        g.l("L_sth")
        stores(" " + args.hst)
        g.l("L_std")
    else:
        stores("")
    e("s_cmp_ge_u32 s46, 8")
    e("s_cbranch_scc1 L_io_done")
    e("s_add_u32 s46, s46, 8")
    if args.ioprio: e("s_setprio 1")
    e("s_branch L_ejob")
    g.l("L_io_done")
    if args.wb:
        e("s_lshl_b32 s7, s89, 3")
        e("s_add_u32 s7, s7, s3")
        e("s_cmp_eq_u32 s7, 15")
        e("s_cbranch_scc1 L_dowb")
        if args.wb >= 2:
            e("s_cmp_lg_u32 s7, 3")
            e("s_cbranch_scc1 L_nowb")
            e("s_and_b32 s7, s5, %d" % (args.wbm - 1))
            e("s_cmp_lg_u32 s7, 0")
            e("s_cbranch_scc1 L_nowb")
        else:
            e("s_branch L_nowb")
        g.l("L_dowb")
        if args.wbone:
            e("s_cmp_lg_u32 s5, %d" % args.wbone)
            e("s_cbranch_scc1 L_nowb")
        e("s_waitcnt vmcnt(0)")
        e("buffer_wbl2 %s" % args.wbfl)
        e("s_waitcnt vmcnt(0)")
        g.l("L_nowb")
    stamp_flush()
    e("s_endpgm")

    mark_mf = len(g.lines)
    g.l("L_mfma")
    e("s_sub_u32 s3, s3, 8")
    e("s_add_u32 s7, s10, s3")
    e("s_lshl_b32 s11, s7, 12")
    e("s_lshr_b32 s44, s7, 1")
    e("s_lshl_b32 s44, s44, 2")
    e("s_and_b32 s45, s7, 1")
    e("v_lshlrev_b32 v1, 4, v0")
    e("v_subrev_u32 v2, 4, v1")
    e("s_cmp_lg_u32 s89, 0")
    e("s_cselect_b32 s7, 32768, 0")
    e("s_cselect_b32 s22, 0, 2048")
    sel(23, HCP_H, HCP_M)
    sel(49, XCP_H, XCP_M)
    sel(50, 2 * HCP_H, 2048)
    e("v_add_u32 v3, s22, v1")
    e("v_subrev_u32 v4, 4, v3")
    e("s_waitcnt lgkmcnt(0)")
    stamp(0)
    e("s_add_u32 s12, s36, s11")
    e("s_addc_u32 s13, s37, 0")
    e("s_and_b32 s13, s13, 0xffff")
    e("s_mov_b32 s14, 4096")
    e("s_mov_b32 s15, 0x20000")
    e("s_add_u32 s16, s12, s7")
    e("s_addc_u32 s17, s13, 0")
    e("s_mov_b32 s18, 4096")
    e("s_mov_b32 s19, 0x20000")
    e("s_add_u32 s38, s38, s44")
    e("s_addc_u32 s39, s39, 0")
    e("s_load_dword s40, s[38:39], 0")
    e("s_cmp_lg_u32 s89, 0")
    e("s_cselect_b32 s7, 16, 0")
    e("s_load_dword s41, s[38:39], s7")
    def ipf():
        if not args.ipf: return
        e("s_cmp_ge_u32 s3, %d" % args.ipf)
        e("s_cbranch_scc1 L_noipf")
        e("s_cmp_ge_u32 s5, 24")
        e("s_cbranch_scc1 L_noipf")
        srd(52, 30, 2621440); srd(56, 32, 2621440)
        e("s_mul_i32 s46, s3, 24")
        e("s_add_u32 s46, s46, s5")
        pf_addr(80, 81, 82, 46, 512 * args.ipf0)
        e("buffer_load_dword v83, v80, s[52:55], 0 offen")
        e("buffer_load_dword v84, v80, s[56:59], 0 offen")
        g.l("L_noipf")
    ipf()
    def ipfh():
        if not args.ipfh: return
        e("s_cmp_ge_u32 s3, %d" % args.ipfh)
        e("s_cbranch_scc1 L_noipfh")
        e("s_cmp_eq_u32 s89, 0")
        e("s_cbranch_scc1 L_noipfh")
        srd(52, 30, 2621440); srd(56, 32, 2621440)
        e("s_mul_i32 s46, s3, 10")
        e("s_add_u32 s46, s46, s5")
        e("s_sub_u32 s46, s46, 20")
        pf_addr(80, 81, 82, 46, args.ipfh0)
        e("buffer_load_dword v83, v80, s[52:55], 0 offen")
        e("buffer_load_dword v84, v80, s[56:59], 0 offen")
        g.l("L_noipfh")
    ipfh()
    HD = 48; HM = 64
    order = (0, 1, 2, 3)
    if args.order3:
        e("s_setprio 3")
    elif args.order2:
        e("s_setprio 3")
        e("s_barrier")
    for b in order:
        S = "s[12:15]" if b < 2 else "s[16:19]"
        va = "v1" if b < 2 else "v3"
        e("buffer_load_dwordx4 %s, %s, %s, 0 offen offset:%d%s" % (vr(HD + 4 * b, 4), va, S, 1024 * (b & 1), NH))
    if args.order3:
        e("s_setprio 0")
    elif not args.order2:
        e("s_barrier")
    else:
        e("s_setprio 0")
    e("s_mul_i32 s20, s3, %d" % HSLOT)
    e("s_and_b32 s7, s3, 3")
    e("s_mul_i32 s21, s7, %d" % XCH)
    e("s_lshr_b32 s7, s3, 2")
    e("s_mul_i32 s7, s7, %d" % XG)
    e("s_add_u32 s21, s21, s7")
    e("s_add_u32 s21, s21, %d" % XB)
    for i in range(4):
        e("v_mov_b32 v%d, 0" % (4 + i))
    e("v_and_b32 v3, 31, v0")
    e("v_min_u32 v3, 27, v3")
    e("v_lshlrev_b32 v3, 4, v3")
    e("v_lshrrev_b32 v8, 5, v0")
    e("v_mul_u32_u24 v9, s23, v8")
    e("v_add3_u32 v3, v3, v9, s20")
    e("ds_write_b128 v3, v[4:7]")
    e("v_and_b32 v10, 31, v0")
    e("v_min_u32 v10, 16, v10")
    e("v_lshlrev_b32 v10, 2, v10")
    e("s_add_u32 s7, s49, 4")
    e("v_mul_u32_u24 v9, s7, v8")
    e("v_sub_u32 v10, v10, v9")
    e("s_lshl_b32 s7, s49, 1")
    e("s_add_u32 s7, s7, s21")
    e("s_add_u32 s7, s7, %d" % (X0OFF - 128))
    e("v_add_u32 v10, s7, v10")
    e("ds_write_b32 v10, v4")
    e("s_cmp_eq_u32 s89, 0")
    e("s_cbranch_scc1 L_nopad2")
    e("ds_write_b128 v3, v[4:7] offset:%d" % (2 * HCP_H))
    e("ds_write_b32 v10, v4 offset:%d" % XHALF)
    g.l("L_nopad2")
    VA = 1; VB = 2; VYW = 3
    e("v_add_u32 v40, s20, v1")
    e("v_add_u32 v46, s50, v40")
    e("v_add_u32 v47, s23, v40")
    e("v_add_u32 v76, s23, v46")
    e("v_and_b32 v41, 1, v0")
    e("v_xor_b32 v41, 1, v41")
    e("v_mul_u32_u24 v41, s23, v41")
    e("v_bfe_u32 v42, v0, 1, 3")
    e("v_lshlrev_b32 v42, 6, v42")
    e("v_lshrrev_b32 v43, 4, v0")
    e("v_lshlrev_b32 v44, 4, v43")
    e("v_add3_u32 v41, v41, v42, v44")
    e("v_add_u32 v%d, s20, v41" % VA)
    e("v_and_b32 v41, 1, v0")
    e("s_add_u32 s7, s49, 4")
    e("v_mul_u32_u24 v41, s7, v41")
    e("v_and_b32 v42, 15, v0")
    e("v_lshlrev_b32 v45, 2, v42")
    e("v_sub_u32 v41, v41, v45")
    e("v_add3_u32 v41, v41, v44, s21")
    e("v_add_u32 v%d, %d, v41" % (VB, X0OFF + 56))
    e("v_lshlrev_b32 v41, 8, v43")
    e("v_lshlrev_b32 v45, 3, v42")
    e("v_add3_u32 v41, v41, v45, s21")
    e("v_add_u32 v%d, %d, v41" % (VYW, X0OFF + 64))
    ACC = 8
    for i in range(32):
        e("v_mov_b32 v%d, 0" % (ACC + i))
    e("s_waitcnt lgkmcnt(0)")
    e("s_lshl_b32 s42, s40, 16")
    e("s_and_b32 s40, s40, 0xffff0000")
    e("s_lshl_b32 s43, s41, 16")
    e("s_and_b32 s41, s41, 0xffff0000")
    e("s_cmp_eq_u32 s45, 0")
    e("s_cselect_b32 s40, s42, s40")
    e("s_cselect_b32 s41, s43, s41")
    e("s_cmp_eq_u32 s89, 0")
    e("s_cselect_b32 s41, 0, s41")
    for n, b in enumerate(order):
        d = HD + 4 * b
        o = 68 + 4 * (n & 1)
        if b == 0:
            e("v_mov_b32 v%d, 0" % HM)
        else:
            e("v_readlane_b32 s46, v%d, 63" % (d - 1))
            if b == 2:
                e("s_cmp_eq_u32 s89, 0")
                e("s_cselect_b32 s46, s46, 0")
            else:
                e("s_nop 1")
            e("v_mov_b32 v%d, s46" % (HM + b))
        e("s_waitcnt vmcnt(%d)" % (3 - n))
        e("s_nop 0")
        e("v_mov_b32_dpp v%d, v%d wave_shr:1 row_mask:0xf bank_mask:0xf" % (HM + b, d + 3))
        if b in (0, 2):
            e("s_mov_b64 exec, 1")
            e("v_lshlrev_b32 v77, 16, v%d" % d)
            e("v_and_b32 v78, 0xffff0000, v%d" % d)
            e("v_add_f32 v77, s%d, v77" % (40 + (b >> 1)))
            e("v_cvt_pk_bf16_f32 v%d, v77, v78" % d)
            e("s_mov_b64 exec, -1")
        e("ds_write_b128 %s, %s offset:%d" % ("v40" if b < 2 else "v46", vr(d, 4), 448 + 1024 * (b & 1)))
        e("v_alignbit_b32 v%d, v%d, v%d, 16" % (o + 0, d + 0, HM + b))
        e("v_alignbit_b32 v%d, v%d, v%d, 16" % (o + 1, d + 1, d + 0))
        e("v_alignbit_b32 v%d, v%d, v%d, 16" % (o + 2, d + 2, d + 1))
        e("v_alignbit_b32 v%d, v%d, v%d, 16" % (o + 3, d + 3, d + 2))
        e("ds_write_b128 %s, %s offset:%d" % ("v47" if b < 2 else "v76", vr(o, 4), 448 + 1024 * (b & 1)))
    e("v_mov_b32 v4, %d" % CTL)
    e("v_mov_b32 v5, 1")
    e("s_waitcnt lgkmcnt(0)")
    stamp(1)
    if args.order3: e("s_barrier")
    e("s_cmp_lg_u32 s89, 0")
    e("s_cbranch_scc1 L_mfma_h")

    if args.layout:
        e("s_branch L_mfma_m")
        io = g.lines[mark_io:mark_mf]; mf = g.lines[mark_mf:]
        head = g.lines[:mark_io - 2] + ["    s_cmp_lt_u32 s3, 8", "    s_cbranch_scc1 L_io"]
        g.lines[:] = head + mf + ["L_io:"] + io + ["L_mfma_m:"]
    def wait_flags(blocks):
        lp = g.newlab("L_xwait")
        if args.poll1: e("s_mov_b64 exec, 1")
        g.l(lp)
        lo = blocks[0] & ~1
        n2 = (blocks[-1] - lo) // 2 + 1
        for i in range(n2):
            e("ds_read_b64 v[%d:%d], v4 offset:%d" % (120 + 2 * i, 121 + 2 * i, 4 * lo + 8 * i))
        e("s_waitcnt lgkmcnt(0)")
        r0 = 120 + blocks[0] - lo
        for b in blocks[1:]:
            e("v_and_b32 v%d, v%d, v%d" % (r0, r0, 120 + b - lo))
        e("s_nop 0")
        e("v_readfirstlane_b32 s7, v%d" % r0)
        e("s_bitcmp1_b32 s7, 2")
        e("s_cbranch_scc1 %s_done" % lp)
        e("s_sleep %d" % args.xsleep)
        e("s_branch %s" % lp)
        g.l(lp + "_done")
        if args.poll1: e("s_mov_b64 exec, -1")

    def front(steps, setbase, nregs, maxsets, waitfn, allA=False):
        if allA:
            nA = sum(1 for st in steps for r in st[0] if r[1] == 'A')
            bsz = 4 * max(sum(1 for r in st[0] if r[1] == 'B') for st in steps)
            nsets = min((nregs - 4 * nA) // bsz, len(steps) + 1)
            amap = {}; r = setbase
            for si, st in enumerate(steps):
                for (key, kind, ar, off) in st[0]:
                    if kind == 'A': amap[key] = r; r += 4
            bbase = r
            def regs(si, reads):
                m = {}; r = bbase + (si % nsets) * bsz
                for (key, kind, ar, off) in reads:
                    if kind == 'A': m[key] = amap[key]
                    else: m[key] = r; r += 4
                return m
        else:
            setsize = 4 * max(len(st[0]) for st in steps)
            nsets = min(nregs // setsize, maxsets, len(steps) + 1)
            def regs(si, reads):
                m = {}; r = setbase + (si % nsets) * setsize
                for (key, kind, ar, off) in reads:
                    m[key] = r; r += 4
                return m
        assert nsets >= 2
        LA = nsets - 1
        issued = []; pre = set()
        def rinstrs(si, kinds="AB"):
            reads = steps[si][0]; m = regs(si, reads); out = []
            for (key, kind, ar, off) in reads:
                if kind not in kinds or (si, key) in pre: continue
                if kind == 'A':
                    out.append(((si, key), "ds_read_b128 %s, v%d offset:%d" % (vr(m[key], 4), ar, off)))
                else:
                    out.append(((si, key), "ds_read_b64 %s, v%d offset:%d" % (vr(m[key], 2), ar, off)))
                    out.append(((si, key), "ds_read_b64 %s, v%d offset:%d" % (vr(m[key] + 2, 2), ar, off + 8)))
            return out
        done_upto = [0]
        def need(keys):
            keys = keys - pre
            if not keys: return
            last = max(i for i, k in enumerate(issued) if k in keys)
            if last < done_upto[0]: return
            n = min(len(issued) - 1 - last, 14)
            e("s_waitcnt lgkmcnt(%d)" % n)
            done_upto[0] = len(issued) - n
        if args.preA:
            for si in range(len(steps) if allA else min(LA, len(steps))):
                l_ = rinstrs(si, "A")
                for k, s_ in l_: e(s_)
                for k, s_ in l_: pre.add(k)
        waitfn()
        for si in range(min(LA, len(steps))):
            for k, s_ in rinstrs(si):
                e(s_); issued.append(k)
        for si, (reads, mf) in enumerate(steps):
            m = regs(si, reads)
            nxt = rinstrs(si + LA) if si + LA < len(steps) else []
            nm = len(mf); pos = 0
            for i, (acc, ka, kb) in enumerate(mf):
                need({(si, ka), (si, kb)})
                e("v_mfma_f32_16x16x32_bf16 %s, %s, %s, %s" % (vr(acc, 4), vr(m[ka], 4), vr(m[kb], 4), vr(acc, 4)))
                tgt = min(len(nxt), (len(nxt) * (i + 1) + nm - 1) // nm)
                while pos < tgt:
                    k, s_ = nxt[pos]; e(s_); issued.append(k); pos += 1

    def mk_steps(qs, rlo, rhi, nblk, aoff, boff, accbase, tag, skip7=(), add7=()):
        steps = []
        for t in range(8):
            qq = [q for q in qs if not (t == 7 and q in skip7)] + (list(add7) if t == 7 else [])
            units = [(p, q) for q in qq for p in range(nblk) if rlo <= p + q <= rhi]
            units.sort(key=lambda u: (u[0], u[1]))
            reads = []; seen = set()
            for (p, q) in units:
                for key in (('B', q, tag, t), ('A', p, tag, t)):
                    if key in seen: continue
                    seen.add(key)
                    if key[0] == 'A': reads.append((key, 'A', VA, aoff + 512 * p + 64 * t))
                    else: reads.append((key, 'B', VB, boff + 512 * (nblk - 1 - q) + 64 * t))
            mf = [(accbase + 4 * (p + q - rlo), ('A', p, tag, t), ('B', q, tag, t)) for (p, q) in units]
            if mf: steps.append((reads, mf))
        return steps
    def merge(steps, maxfr):
        out = []
        for s in steps:
            if out and len(out[-1][0]) + len(s[0]) <= maxfr:
                out[-1] = (out[-1][0] + s[0], out[-1][1] + s[1])
            else:
                out.append(s)
        return out

    def yout(accs, cnt_idx):
        e("s_nop 7")
        for (a, off) in accs:
            e("ds_write_b64 v%d, %s offset:%d" % (VYW, vr(a, 2), off))
            e("ds_write_b64 v%d, %s offset:%d" % (VYW, vr(a + 2, 2), off + 128))
        e("s_waitcnt lgkmcnt(0)")
        e("s_mov_b64 exec, 1")
        e("ds_add_u32 v4, v5 offset:%d" % (32 + 4 * cnt_idx))
        e("s_mov_b64 exec, -1")
        if args.wake:
            e("s_waitcnt lgkmcnt(0)")
            e("s_wakeup")

    fronts = [[int(c) for c in f] for f in args.mfronts.split(",")]
    sl = 2
    for fi, f in enumerate(fronts):
        if args.mprio: e("s_setprio %s" % args.mp[fi])
        def wf(f=f, sl=sl):
            wait_flags(f); stamp(sl)
        sl += 1
        before = set(q for ff in fronts[:fi] for q in ff); now = before | set(f)
        skip7 = tuple(q for q in f if q > 0 and (q - 1) not in now)
        add7 = tuple(q + 1 for q in f if (q + 1) in before)
        front(mk_steps(f, 4, 7, 8, 0, 0, ACC, 0, skip7=skip7, add7=add7), 24, 96, args.lastsets if fi == len(fronts) - 1 else args.maxsets, wf, allA=(args.preA >= 2 and fi == len(fronts) - 1))
        if set(range(6)) <= now and not set(range(6)) <= before:
            yout([(ACC, 1024), (ACC + 4, 1024 + XCP_M)], 2)
        if fi == len(fronts) - 1:
            yout([(ACC + 8, 0), (ACC + 12, XCP_M)], 3)
        stamp(sl); sl += 1
    stamp_flush()
    e("s_endpgm")

    g.l("L_mfma_h")
    hfronts = [[int(c) for c in f] for f in args.hfronts.split(",")]
    sl = 2
    for fi, f in enumerate(hfronts):
        if args.mprio: e("s_setprio %s" % args.hp[fi])
        def wf(f=f, sl=sl):
            wait_flags(f); stamp(sl)
        sl += 1
        s0 = mk_steps(f, 0, 3, 4, 0, 0, ACC, 0)
        s1 = mk_steps(f, 0, 3, 4, 2 * HCP_H, XHALF, ACC + 16, 1)
        steps = []
        for a, b in zip(s0, s1): steps += [a, b]
        front(steps, 40, 80, args.lastsets if fi == len(hfronts) - 1 else args.maxsets, wf)
        if 1 in f:
            yout([(ACC, 1024), (ACC + 4, 1024 + XCP_H), (ACC + 16, XHALF + 1024), (ACC + 20, XHALF + 1024 + XCP_H)], 0)
        if 3 in f:
            yout([(ACC + 8, 0), (ACC + 12, XCP_H), (ACC + 24, XHALF), (ACC + 28, XHALF + XCP_H)], 1)
        stamp(sl); sl += 1
    stamp_flush()
    e("s_endpgm")

    if args.pwg:
        g.l("L_pf")
        if args.wswap: e("s_xor_b32 s3, s3, 8")
        e("s_waitcnt lgkmcnt(0)")
        srd(12, 30, 2621440); srd(16, 32, 2621440); srd(20, 28, 2621440)
        e("s_lshl_b32 s46, s3, 1")
        e("s_add_u32 s46, s46, s5")
        e("s_sub_u32 s46, s46, 30")
        pf_addr(8, 9, 10, 46, 0)
        n = 20
        pf_addr(11, 9, 10, 3, 0)
        e("s_cmp_eq_u32 s5, 30")
        e("s_cselect_b32 s40, s12, s16")
        e("s_cselect_b32 s41, s13, s17")
        e("s_mov_b32 s42, 2621440")
        e("s_mov_b32 s43, 0x20000")
        for item in args.pprog.split(","):
            row = int(item[1:])
            e("s_mov_b32 s7, %d" % (row * 1280))
            if item[0] == "p":
                e("buffer_load_dword v%d, v11, s[40:43], s7 offen" % n); n += 1
            elif item[0] == "h":
                lp = g.newlab("L_ph")
                e("s_cmp_ge_u32 s3, 8")
                e("s_cbranch_scc1 %s" % lp)
                e("buffer_load_dword v%d, v11, s[40:43], s7 offen" % n); n += 1
                g.l(lp)
            else:
                t = {"k": "s[12:15]", "v": "s[16:19]", "q": "s[20:23]"}[item[0]]
                e("buffer_load_dword v%d, v8, %s, s7 offen" % (n, t)); n += 1
            e("s_barrier")
        e("s_waitcnt vmcnt(0)")
    g.l("L_end")
    e("s_endpgm")

    out = HEADER
    out += "; @launch grid=(%d,1,1) block=(1024,1,1) lds=%d\n" % (NWG, LDS_BYTES)
    out += DOC
    out += '.amdgcn_target "amdgcn-amd-amdhsa--gfx950"\n.text\n.globl %s_kernel\n.p2align 8\n.type %s_kernel,@function\n' % (NAME, NAME)
    out += "\n".join(g.lines) + "\n"
    out += '''.section .rodata,"a"
.p2align 6
.amdhsa_kernel %s_kernel
  .amdhsa_next_free_vgpr 128
  .amdhsa_next_free_sgpr 102
  .amdhsa_accum_offset 128
  .amdhsa_group_segment_fixed_size 0
  .amdhsa_kernarg_size 120
  .amdhsa_user_sgpr_count 2
  .amdhsa_user_sgpr_kernarg_segment_ptr 1
  .amdhsa_system_sgpr_workgroup_id_x 1
  .amdhsa_float_denorm_mode_32 3
.end_amdhsa_kernel
''' % NAME
    return out

if __name__ == "__main__":
    ap = argparse.ArgumentParser()
    ap.add_argument("-o", default="cdna_kernels/%s.s" % NAME)
    ap.add_argument("--pwg", type=int, default=1)
    ap.add_argument("--hpf", type=int, default=1)
    ap.add_argument("--kvfirst", type=int, default=0)
    ap.add_argument("--ipf", type=int, default=0)
    ap.add_argument("--kfl", default="")
    ap.add_argument("--vfl", default="")
    ap.add_argument("--mswap", type=int, default=0)
    ap.add_argument("--hpf0", type=int, default=0)
    ap.add_argument("--hpf0w", type=int, default=4)
    ap.add_argument("--hpf0r", type=int, default=512)
    ap.add_argument("--wbone", type=int, default=0)
    ap.add_argument("--wbfl", default="sc1")
    ap.add_argument("--wake", type=int, default=0)
    ap.add_argument("--xsleep", type=int, default=1)
    ap.add_argument("--ysleep2", type=int, default=1)
    ap.add_argument("--hst", default="")
    ap.add_argument("--hst1", type=int, default=0)
    ap.add_argument("--wb", type=int, default=0)
    ap.add_argument("--wbm", type=int, default=4)
    ap.add_argument("--order3", type=int, default=1)
    ap.add_argument("--layout", type=int, default=1)
    ap.add_argument("--poll1", type=int, default=1)
    ap.add_argument("--ysleep", type=int, default=8)
    ap.add_argument("--hack", type=int, default=0)
    ap.add_argument("--rot", type=int, default=4)
    ap.add_argument("--qrot", type=int, default=1)
    ap.add_argument("--preA", type=int, default=2)
    ap.add_argument("--cpf", type=int, default=0)
    ap.add_argument("--ipfh", type=int, default=0)
    ap.add_argument("--ipfh0", type=int, default=512)
    ap.add_argument("--wswap", type=int, default=1)
    ap.add_argument("--ioprio", type=int, default=1)
    ap.add_argument("--mp", default="2210")
    ap.add_argument("--hp", default="10")
    ap.add_argument("--order2", type=int, default=0)
    ap.add_argument("--lastsets", type=int, default=2)
    ap.add_argument("--ipf0", type=int, default=1)
    ap.add_argument("--pprog", default="k1024,v1024,q1024,q1706")
    ap.add_argument("--stamp", type=int, default=0)
    ap.add_argument("--nth", type=int, default=0)
    ap.add_argument("--horder", type=int, default=0)
    ap.add_argument("--maxsets", type=int, default=2)
    ap.add_argument("--mprio", type=int, default=1)
    ap.add_argument("--mfronts", default="01,23,45,67")
    ap.add_argument("--hfronts", default="01,23")
    a = ap.parse_args()
    open(a.o, "w").write(build(a))
    print("wrote", a.o, "LDS", LDS_BYTES)
```

```python
import sys, argparse

NAME = "concat_heads__ssm_conv_h3__ssm_conv_h3__prompt"
HEADER = open("cdna_kernels/%s.s.ref" % NAME).read().split("; Override launch geometry")[0]

HCP_M = 4576; HCP_H = 2528
HSLOT = 4 * HCP_H
XB = 8 * HSLOT
XCH = 8960
XG = 4 * XCH + 64
XHALF = 4384
XCP_M = 4224; XCP_H = 2176
X0OFF = 16
CTL = XB + 8 * XCH + 128
LDS_BYTES = CTL + 128

DOC = """;
"""

class Gen:
    def __init__(self):
        self.lines = []; self.lab = 0
    def e(self, s): self.lines.append("    " + s)
    def l(self, s): self.lines.append(s + ":")
    def newlab(self, p="L"):
        self.lab += 1
        return "%s_%d" % (p, self.lab)

def vr(b, n=1):
    return "v%d" % b if n == 1 else "v[%d:%d]" % (b, b + n - 1)

def build(args):
    g = Gen(); e = g.e
    STAMP = args.stamp
    NH = " nt" if args.nth else ""
    def stamp(slot):
        if not STAMP: return
        if STAMP == 2 and slot != 0: return
        if slot == 0:
            e("v_writelane_b32 v127, s98, 0"); return
        e("s_memtime s[90:91]" if STAMP == 3 else "s_memrealtime s[90:91]")
        e("s_waitcnt lgkmcnt(0)")
        if isinstance(slot, str):
            e("s_mov_b32 m0, %s" % slot); e("s_nop 0")
            e("v_writelane_b32 v127, s90, m0")
        else:
            e("v_writelane_b32 v127, s90, %s" % slot)
    def stamp_flush():
        if not STAMP: return
        e("s_waitcnt vmcnt(0)")
        e("s_memtime s[90:91]" if STAMP == 3 else "s_memrealtime s[90:91]")
        e("s_waitcnt lgkmcnt(0)")
        e("v_writelane_b32 v127, s90, 15")
        e("v_lshlrev_b32 v126, 2, v0")
        e("v_add_u32 v126, s96, v126")
        e("s_mov_b64 exec, 0xffff")
        e("buffer_store_dword v127, v126, s[92:95], 0 offen")
    def srd(d, p, n):
        if d != p: e("s_mov_b32 s%d, s%d" % (d, p))
        e("s_and_b32 s%d, s%d, 0xffff" % (d + 1, p + 1))
        e("s_mov_b32 s%d, %d" % (d + 2, n))
        e("s_mov_b32 s%d, 0x20000" % (d + 3))
    def sel(d, a, b):
        e("s_mov_b32 s%d, %d" % (d, b))
        e("s_cmov_b32 s%d, %d" % (d, a))

    def pf_addr(dst, t1, t2, sidx, rowbase_rows):
        e("s_lshl_b32 s7, s%d, 6" % sidx)
        e("v_add_u32 v%d, s7, v0" % dst)
        e("s_mov_b32 s7, 0xAAAB")
        e("v_mul_u32_u24 v%d, s7, v%d" % (t1, dst))
        e("v_lshrrev_b32 v%d, 17, v%d" % (t1, t1))
        e("v_mul_u32_u24 v%d, 3, v%d" % (t2, t1))
        e("v_sub_u32 v%d, v%d, v%d" % (t2, dst, t2))
        e("v_mul_u32_u24 v%d, 1280, v%d" % (t1, t1))
        e("v_lshlrev_b32 v%d, 7, v%d" % (t2, t2))
        e("s_add_u32 s7, s88, %d" % (rowbase_rows * 1280))
        e("v_add3_u32 v%d, v%d, v%d, s7" % (dst, t1, t2))
    NWG = 256 if args.pwg else 240
    g.l(NAME + "_kernel")
    if STAMP: e("s_memtime s[98:99]" if STAMP == 3 else "s_memrealtime s[98:99]")
    e("s_cmp_ge_u32 s2, %d" % NWG)
    e("s_cbranch_scc1 L_end")
    e("v_lshrrev_b32 v1, 6, v0")
    e("s_and_b32 s4, s2, 7")
    e("s_lshr_b32 s5, s2, 3")
    e("v_readfirstlane_b32 s3, v1")
    e("v_and_b32 v0, 63, v0")
    if args.wswap:
        e("s_xor_b32 s3, s3, 8")
    e("s_lshr_b32 s6, s4, 2")
    e("s_mul_i32 s7, s6, 48")
    e("s_add_u32 s8, s0, s7")
    e("s_addc_u32 s9, s1, 0")
    e("s_load_dwordx4 s[28:31], s[8:9], 0")
    e("s_load_dwordx4 s[32:35], s[8:9], 16")
    e("s_load_dwordx4 s[36:39], s[8:9], 32")
    e("s_load_dwordx2 s[24:25], s[0:1], 96")
    if args.cpf:
        e("s_cmp_lg_u32 s3, %d" % (8 if args.wswap else 0))
        e("s_cbranch_scc1 L_nocpf")
        e("s_getpc_b64 s[40:41]")
        g.l("L_pc")
        e("s_sub_u32 s40, s40, L_pc-%s_kernel" % NAME)
        e("s_subb_u32 s41, s41, 0")
        if args.cpf == 1:
            e("s_lshl_b32 s7, s5, 9")
            e("v_lshlrev_b32 v100, 7, v0")
            e("v_add_u32 v100, s7, v100")
            e("v_min_u32 v100, L_end-%s_kernel, v100" % NAME)
            e("s_mov_b64 exec, 15")
            e("global_load_dword v101, v100, s[40:41]")
            e("s_mov_b64 exec, -1")
        else:
            e("s_cmp_ge_u32 s5, 2")
            e("s_cbranch_scc1 L_nocpf")
            e("s_lshl_b32 s7, s5, 13")
            e("v_lshlrev_b32 v100, 7, v0")
            e("v_add_u32 v100, s7, v100")
            e("v_min_u32 v100, L_end-%s_kernel, v100" % NAME)
            e("global_load_dword v101, v100, s[40:41]")
        g.l("L_nocpf")
    if STAMP:
        e("s_load_dwordx2 s[92:93], s[0:1], 112")
        e("s_mov_b32 s94, 0x1000000")
        e("s_mov_b32 s95, 0x20000")
        e("s_lshl_b32 s96, s2, 4")
        e("s_add_u32 s96, s96, s3")
        e("s_lshl_b32 s96, s96, 6")
        e("v_mov_b32 v127, 0")
    e("s_and_b32 s7, s4, 3")
    e("s_mul_i32 s7, s7, 160")
    e("s_lshl_b32 s10, s5, 3")
    e("s_lshl_b32 s11, s5, 4")
    e("s_sub_u32 s11, s11, 320")
    e("s_cmp_ge_u32 s5, 20")
    e("s_cselect_b32 s10, s11, s10")
    e("s_cselect_b32 s89, 1, 0")
    e("s_add_u32 s10, s10, s7")
    e("s_lshl_b32 s88, s7, 1")
    e("s_and_b32 s88, s88, 0xffffff80")
    if args.pwg:
        e("s_cmp_ge_u32 s5, 30")
        e("s_cbranch_scc1 L_pf")
    e("v_lshlrev_b32 v1, 2, v0")
    e("v_and_b32 v1, 124, v1")
    e("v_add_u32 v1, %d, v1" % CTL)
    e("v_mov_b32 v2, 0")
    e("ds_write_b32 v1, v2")
    e("s_cmp_ge_u32 s3, 8")
    e("s_cbranch_scc1 L_mfma")
    mark_io = len(g.lines)

    VL = 1
    VO = 2
    VXL = 3
    VYL = 4
    VA_ = 5; VB_ = 6; VC_ = 7; VD_ = 8
    WP = 10
    W = 18
    K = 34
    V = 48
    T = 56
    XP = 86
    Q = 94
    QF = 102
    e("s_setprio 3")
    e("s_cmp_lg_u32 s89, 0")
    e("s_cselect_b32 s40, 2, 1")
    sel(41, 64, 128)
    sel(42, 0x000F000F, 0x00030003)
    e("s_mov_b32 s43, s42")
    sel(49, XCP_H, XCP_M)
    sel(50, XB + X0OFF + XCP_H + 2040, XB + X0OFF + XCP_M + 4088)
    e("s_cselect_b32 s44, 1, 2")
    e("s_cselect_b32 s45, 3, 1")
    e("v_lshrrev_b32 v%d, s40, v0" % VA_)
    e("v_and_b32 v%d, s45, v0" % VB_)
    e("v_mul_u32_u24 v%d, 5120, v%d" % (VL, VA_))
    e("v_lshlrev_b32 v%d, 3, v%d" % (VC_, VB_))
    e("s_lshl_b32 s7, s10, 1")
    e("v_add3_u32 v%d, v%d, v%d, s7" % (VL, VL, VC_))
    e("v_lshlrev_b32 v%d, 5, v%d" % (VD_, VB_))
    e("s_lshl_b32 s7, s10, 3")
    e("v_add_u32 v%d, s7, v%d" % (VD_, VD_))
    e("s_waitcnt lgkmcnt(0)")
    stamp(0)
    srd(12, 30, 2621440); srd(16, 32, 2621440); srd(20, 28, 2621440); srd(52, 34, 5120)
    if args.order3:
        e("s_cmp_lt_u32 s3, 4")
        e("s_cbranch_scc1 L_nobar1")
        e("s_barrier")
        g.l("L_nobar1")
    elif args.order2:
        e("s_cmp_lt_u32 s3, %d" % args.order2)
        e("s_cbranch_scc1 L_nobar1")
        e("s_setprio 2")
        e("s_barrier")
        g.l("L_nobar1")
    elif not args.kvfirst:
        e("s_barrier")
    e("buffer_load_dwordx4 %s, v%d, s[52:55], 0 offen" % (vr(WP, 4), VD_))
    e("buffer_load_dwordx4 %s, v%d, s[52:55], 0 offen offset:16" % (vr(WP + 4, 4), VD_))
    def rotated(seq, nrot):
        if nrot <= 1:
            for x in seq: e(x)
            return
        lp = g.newlab("L_rot")
        step = len(seq) // nrot
        e("s_and_b32 s7, s5, %d" % (nrot - 1))
        for j in range(1, nrot):
            e("s_cmp_eq_u32 s7, %d" % j)
            e("s_cbranch_scc1 %s_%d" % (lp, j))
        for j in range(nrot):
            if j: g.l("%s_%d" % (lp, j))
            for x in seq[j * step:] + seq[:j * step]: e(x)
            if j < nrot - 1: e("s_branch %s_end" % lp)
        g.l(lp + "_end")
    def issue_kv(chunk_sgpr):
        e("s_mul_i32 s7, s%d, s41" % chunk_sgpr)
        e("s_mul_i32 s7, s7, 1280")
        e("v_add_u32 v%d, s7, v%d" % (VC_, VL))
        e("v_subrev_u32 v%d, 3840, v%d" % (VD_, VC_))
        ks = ["buffer_load_dwordx2 %s, v%d, s[12:15], 0 offen offset:%d%s" % (vr(K + 6 + 2 * r, 2), VC_, 1280 * r, args.kfl) for r in range(4)]
        vs = ["buffer_load_dwordx2 %s, v%d, s[16:19], 0 offen offset:%d%s" % (vr(V + 2 * r, 2), VC_, 1280 * r, args.vfl) for r in range(4)]
        halo = ["s_mov_b64 exec, s[42:43]"] + ["buffer_load_dwordx2 %s, v%d, s[12:15], 0 offen offset:%d" % (vr(K + 2 * r, 2), VD_, 1280 * r) for r in range(3)] + ["s_mov_b64 exec, -1"]
        if args.ksplit:
            nrot = args.rot; lp = g.newlab("L_rot"); step = 4 // nrot
            if nrot > 1:
                e("s_and_b32 s7, s5, %d" % (nrot - 1))
                for j in range(1, nrot):
                    e("s_cmp_eq_u32 s7, %d" % j)
                    e("s_cbranch_scc1 %s_%d" % (lp, j))
            for j in range(nrot):
                if j: g.l("%s_%d" % (lp, j))
                for x in ks[j * step:] + ks[:j * step] + halo + vs[j * step:] + vs[:j * step]: e(x)
                if j < nrot - 1: e("s_branch %s_end" % lp)
            g.l(lp + "_end")
        else:
            seq = []
            for r in range(4): seq += [ks[r], vs[r]]
            rotated(seq, args.rot)
            for x in halo: e(x)
    e("s_mov_b32 s46, s3")
    if args.mswap:
        e("s_xor_b32 s7, s3, 4")
        e("s_cmp_eq_u32 s89, 0")
        e("s_cselect_b32 s46, s7, s3")
    issue_kv(46)
    if args.order3:
        e("s_cmp_ge_u32 s3, 4")
        e("s_cbranch_scc1 L_nobar2")
        e("s_barrier")
        g.l("L_nobar2")
    elif args.order2:
        e("s_cmp_ge_u32 s3, %d" % args.order2)
        e("s_cbranch_scc1 L_nobar2")
        e("s_barrier")
        g.l("L_nobar2")
        e("s_setprio 3")
    elif args.kvfirst:
        e("s_barrier")
    e("s_mov_b32 s58, 0")
    if args.hpf0:
        e("s_cmp_eq_u32 s89, 0")
        e("s_cbranch_scc1 L_nohpf0")
        e("s_cmp_lt_u32 s3, %d" % args.hpf0w)
        e("s_cbranch_scc1 L_nohpf0")
        e("s_sub_u32 s56, s3, %d" % args.hpf0w)
        e("s_mul_i32 s56, s56, 10")
        e("s_add_u32 s56, s56, s5")
        e("s_sub_u32 s56, s56, 20")
        e("s_cmp_ge_u32 s56, %d" % args.hpf0)
        e("s_cbranch_scc1 L_nohpf0")
        pf_addr(Q, Q + 1, Q + 2, 56, args.hpf0r)
        e("buffer_load_dword v%d, v%d, s[12:15], 0 offen" % (Q + 3, Q))
        e("buffer_load_dword v%d, v%d, s[16:19], 0 offen" % (Q + 4, Q))
        e("buffer_load_dword v%d, v%d, s[16:19], 0 offen" % (Q + 5, Q))
        e("s_mov_b32 s58, 2")
        g.l("L_nohpf0")
    stamp(1)
    srd(24, 24, 5242880)
    e("v_mul_u32_u24 v%d, 10240, v%d" % (VO, VA_))
    e("s_mul_i32 s7, s6, 1280")
    e("s_lshl_b32 s11, s10, 1")
    e("s_add_u32 s7, s7, s11")
    e("v_lshlrev_b32 v%d, 3, v%d" % (T, VB_))
    e("v_add3_u32 v%d, v%d, v%d, s7" % (VO, VO, T))
    e("v_and_b32 v%d, 1, v%d" % (T, VB_))
    e("v_mul_u32_u24 v%d, %d, v%d" % (T, XG, T))
    e("v_lshrrev_b32 v%d, 1, v%d" % (T + 1, VB_))
    e("v_mul_u32_u24 v%d, %d, v%d" % (T + 1, XHALF, T + 1))
    e("v_add_u32 v%d, v%d, v%d" % (T, T, T + 1))
    e("v_lshlrev_b32 v%d, 3, v%d" % (T + 1, VA_))
    e("v_sub_u32 v%d, v%d, v%d" % (VXL, T, T + 1))
    e("v_add_u32 v%d, s50, v%d" % (VXL, VXL))
    e("v_lshlrev_b32 v%d, 4, v%d" % (T + 1, VA_))
    e("v_add_u32 v%d, v%d, v%d" % (VYL, T, T + 1))
    e("v_add_u32 v%d, %d, v%d" % (VYL, XB + X0OFF + 64, VYL))
    e("s_mov_b32 s48, 0xffff0000")
    e("s_waitcnt vmcnt(11)")
    for i in range(4):
        e("v_lshlrev_b32 v%d, 16, v%d" % (W + 4 * i + 0, WP + 2 * i))
        e("v_and_b32 v%d, s48, v%d" % (W + 4 * i + 1, WP + 2 * i))
        e("v_lshlrev_b32 v%d, 16, v%d" % (W + 4 * i + 2, WP + 2 * i + 1))
        e("v_and_b32 v%d, s48, v%d" % (W + 4 * i + 3, WP + 2 * i + 1))
    e("s_mov_b32 s47, 0")
    g.l("L_xjob")
    e("s_mul_i32 s7, s46, s41")
    e("s_lshl_b32 s11, s7, 1")
    e("v_subrev_u32 v%d, s11, v%d" % (VA_, VXL))
    e("v_subrev_u32 v%d, s49, v%d" % (VB_, VA_))
    e("v_subrev_u32 v%d, 4, v%d" % (9, VB_))
    e("s_lshr_b32 s7, s7, 8")
    e("s_lshl_b32 s7, s7, 2")
    e("s_add_u32 s51, s7, %d" % CTL)
    KS = 4 if args.ksplit else 0
    EX = 4 if args.qearly else 3
    e("s_or_b32 s59, s47, s58")
    e("s_mov_b32 s58, 0")
    def wait_kv(n, tag):
        e("s_waitcnt vmcnt(%d)" % (n + EX))
        e("s_cmp_eq_u32 s59, 2")
        e("s_cbranch_scc1 %s" % tag)
        e("s_waitcnt vmcnt(%d)" % n)
        g.l(tag)
    wait_kv(KS, "L_w1")
    if args.ioprio: e("s_setprio 3")
    if STAMP == 1 or STAMP == 3:
        e("s_min_u32 s97, s47, 1"); e("s_lshl_b32 s97, s97, 1"); e("s_add_u32 s97, s97, 2"); stamp("s97")
    e("s_cmp_lg_u32 s89, 0")
    e("s_cbranch_scc1 L_dpp_h")
    for r in range(3):
        for d in range(2):
            e("v_mov_b32_dpp v%d, v%d row_shr:2 row_mask:0xf bank_mask:0xf" % (K + 2 * r + d, K + 2 * (r + 4) + d))
    e("s_branch L_dpp_done")
    g.l("L_dpp_h")
    for r in range(3):
        for d in range(2):
            e("v_mov_b32_dpp v%d, v%d row_shr:4 row_mask:0xf bank_mask:0xf" % (K + 2 * r + d, K + 2 * (r + 4) + d))
    g.l("L_dpp_done")
    def kpart(d, A):
        for r in (3, 4, 5, 6, 0, 1, 2):
            e("v_lshlrev_b32 v%d, 16, v%d" % (T + r, K + 2 * r + d))
            e("v_and_b32 v%d, s48, v%d" % (T + 7 + r, K + 2 * r + d))
        for h in range(2):
            c = 2 * d + h
            for row in range(4):
                e("v_mul_f32 v%d, v%d, v%d" % (A + h * 4 + row, W + 4 * c + 3, T + 7 * h + row))
            for j in (2, 1, 0):
                for row in range(4):
                    e("v_fmac_f32 v%d, v%d, v%d" % (A + h * 4 + row, W + 4 * c + j, T + 7 * h + row + 3 - j))
    def vpart(d, A, U):
        for row in range(4):
            e("v_lshlrev_b32 v%d, 16, v%d" % (U + row, V + 2 * row + d))
            e("v_and_b32 v%d, s48, v%d" % (U + 4 + row, V + 2 * row + d))
        for i in range(8):
            e("v_mul_f32 v%d, v%d, v%d" % (A + i, A + i, U + i))
        for h in range(2):
            c = 2 * d + h
            e("v_cvt_pk_bf16_f32 v%d, v%d, v%d" % (XP + 2 * c, A + h * 4 + 3, A + h * 4 + 2))
            e("v_cvt_pk_bf16_f32 v%d, v%d, v%d" % (XP + 2 * c + 1, A + h * 4 + 1, A + h * 4 + 0))
        for h in range(2):
            c = 2 * d + h
            e("ds_write_b64 v%d, %s offset:%d" % (VA_, vr(XP + 2 * c, 2), c * XCH))
        c = 2 * d
        e("ds_write2st64_b32 v9, v%d, v%d offset0:%d offset1:%d" % (XP + 2 * c, XP + 2 * c + 2, 35 * c, 35 * (c + 1)))
        e("ds_write2st64_b32 v%d, v%d, v%d offset0:%d offset1:%d" % (VB_, XP + 2 * c + 1, XP + 2 * c + 3, 35 * c, 35 * (c + 1)))
    if args.ksplit:
        kpart(0, T + 14); kpart(1, T + 22)
        wait_kv(0, "L_w2")
        vpart(0, T + 14, T); vpart(1, T + 22, T)
    else:
        for d in range(2):
            kpart(d, T + 14); vpart(d, T + 14, T + 22)
    e("v_mov_b32 v%d, s51" % T)
    e("v_mov_b32 v%d, s44" % (T + 1))
    e("s_waitcnt lgkmcnt(0)")
    e("s_mov_b64 exec, 1")
    e("ds_add_u32 v%d, v%d" % (T, T + 1))
    e("s_mov_b64 exec, -1")
    if args.wake:
        e("s_waitcnt lgkmcnt(0)")
        e("s_wakeup")
    if STAMP == 1 or STAMP == 3:
        e("s_add_u32 s97, s97, 1"); stamp("s97")
    e("s_cmp_lg_u32 s47, 0")
    e("s_cbranch_scc1 L_xdone")
    if args.hack:
        e("s_cmp_lg_u32 s89, 0")
        e("s_cbranch_scc1 L_nohack")
        e("s_mov_b64 exec, 1")
        e("ds_add_u32 v%d, v%d offset:16" % (T, T + 1))
        e("s_mov_b64 exec, -1")
        e("s_branch L_xdone")
        g.l("L_nohack")
    e("s_mov_b32 s47, 1")
    e("s_setprio 2")
    e("s_add_u32 s46, s3, 8")
    issue_kv(46)
    if args.hpf:
        e("s_cmp_lt_u32 s3, 4")
        e("s_cbranch_scc1 L_xjob")
        e("s_cmp_eq_u32 s89, 0")
        e("s_cbranch_scc1 %s" % ("L_mq" if args.qearly else "L_xjob"))
        e("s_mul_i32 s56, s3, 10")
        e("s_add_u32 s56, s56, s5")
        e("s_sub_u32 s56, s56, 60")
        e("s_mov_b32 s47, 2")
        e("s_cmp_ge_u32 s56, 24")
        e("s_cbranch_scc1 L_hpf_q")
        pf_addr(Q, Q + 1, Q + 2, 56, 1536)
        e("buffer_load_dword v%d, v%d, s[12:15], 0 offen" % (Q + 3, Q))
        e("buffer_load_dword v%d, v%d, s[16:19], 0 offen" % (Q + 4, Q))
        if args.qearly == 2:
            e("buffer_load_dword v%d, v%d, s[20:23], 0 offen" % (Q + 5, Q))
            e("v_subrev_u32 v%d, %d, v%d" % (Q + 1, 512 * 1280, Q))
            e("buffer_load_dword v%d, v%d, s[20:23], 0 offen" % (Q + 6, Q + 1))
        else:
            e("s_mov_b64 exec, 1")
            e("buffer_load_dword v%d, v%d, s[16:19], 0 offen" % (Q + 5, Q))
            if args.qearly: e("buffer_load_dword v%d, v%d, s[16:19], 0 offen" % (Q + 6, Q))
            e("s_mov_b64 exec, -1")
        e("s_branch L_xjob")
        g.l("L_hpf_q")
        e("s_sub_u32 s56, s56, 24")
        pf_addr(Q, Q + 1, Q + 2, 56, 0)
        e("s_mov_b32 s7, %d" % (1024 // 3 * 1280))
        e("buffer_load_dword v%d, v%d, s[20:23], 0 offen" % (Q + 3, Q))
        e("buffer_load_dword v%d, v%d, s[20:23], s7 offen" % (Q + 4, Q))
        e("s_mov_b32 s7, %d" % (2048 // 3 * 1280))
        e("buffer_load_dword v%d, v%d, s[20:23], s7 offen" % (Q + 5, Q))
        if args.qearly:
            e("s_mov_b64 exec, 1")
            e("buffer_load_dword v%d, v%d, s[20:23], s7 offen" % (Q + 6, Q))
            e("s_mov_b64 exec, -1")
            e("s_branch L_xjob")
            g.l("L_mq")
            e("s_mov_b32 s47, 2")
            e("s_setprio %d" % args.qep)
            for r in range(4):
                e("buffer_load_dwordx2 %s, v%d, s[20:23], 0 offen offset:%d" % (vr(Q + 2 * r, 2), VC_, 1280 * r))
    e("s_branch L_xjob")
    g.l("L_xdone")
    e("s_setprio 1")
    e("s_add_u32 s7, s3, 8")
    e("s_cmp_lg_u32 s89, 0")
    e("s_cselect_b32 s46, s3, s7")
    g.l("L_ejob")
    e("s_mul_i32 s56, s46, s41")
    if args.qearly:
        e("s_lshl_b32 s7, s89, 2")
        e("s_or_b32 s7, s7, s47")
        e("s_cmp_eq_u32 s7, 2")
        e("s_cbranch_scc1 L_qskip")
    e("s_mul_i32 s7, s56, 1280")
    e("v_add_u32 v%d, s7, v%d" % (VC_, VL))
    rotated(["buffer_load_dwordx2 %s, v%d, s[20:23], 0 offen offset:%d" % (vr(Q + 2 * r, 2), VC_, 1280 * r) for r in range(4)], args.qrot)
    g.l("L_qskip")
    e("s_mul_i32 s7, s56, 2560")
    e("v_add_u32 v%d, s7, v%d" % (VC_, VO))
    e("v_add_u32 v%d, 5120, v%d" % (VD_, VC_))
    e("s_and_b32 s7, s56, 255")
    e("s_lshl_b32 s7, s7, 2")
    e("s_bitcmp1_b32 s56, 8")
    e("s_cselect_b32 s11, s49, 0")
    e("s_add_u32 s7, s7, s11")
    e("s_bitcmp1_b32 s56, 9")
    e("s_cselect_b32 s11, 0, 1024")
    e("s_add_u32 s7, s7, s11")
    e("v_add_u32 v%d, s7, v%d" % (VA_, VYL))
    e("s_lshr_b32 s7, s56, 9")
    e("s_lshl_b32 s7, s7, 2")
    e("s_add_u32 s7, s7, %d" % (CTL + 32))
    e("v_mov_b32 v%d, s7" % VB_)
    e("s_waitcnt vmcnt(0)")
    if args.ioprio: e("s_setprio 3")
    if STAMP == 1 or STAMP == 3:
        e("s_add_u32 s97, s97, 1"); stamp("s97")
    for row in range(4):
        for d in range(2):
            e("v_lshlrev_b32 v%d, 16, v%d" % (QF + 4 * (2 * d) + row, Q + 2 * row + d))
            e("v_and_b32 v%d, s48, v%d" % (QF + 4 * (2 * d + 1) + row, Q + 2 * row + d))
    lp = g.newlab("L_ywait")
    if args.poll1: e("s_mov_b64 exec, 1")
    g.l(lp)
    e("ds_read_b32 v%d, v%d" % (T, VB_))
    e("s_waitcnt lgkmcnt(0)")
    e("v_readfirstlane_b32 s7, v%d" % T)
    e("s_cmp_ge_u32 s7, 8")
    e("s_cbranch_scc1 %s_done" % lp)
    if args.poll1:
        e("s_cmp_lg_u32 s7, 0")
        e("s_cbranch_scc1 %s_s" % lp)
        e("s_sleep %d" % args.ysleep)
        g.l(lp + "_s")
    e("s_sleep %d" % args.ysleep2)
    e("s_branch %s" % lp)
    g.l(lp + "_done")
    if args.poll1: e("s_mov_b64 exec, -1")
    if STAMP == 1 or STAMP == 3:
        e("s_add_u32 s97, s97, 1"); stamp("s97")
    Y = T
    O = T + 16
    for c in range(4):
        e("ds_read_b128 %s, v%d offset:%d" % (vr(Y + 4 * c, 4), VA_, c * XCH))
    for d in range(2):
        e("s_waitcnt lgkmcnt(%d)" % (2 - 2 * d))
        for i in range(8):
            e("v_mul_f32 v%d, v%d, v%d" % (Y + 8 * d + i, Y + 8 * d + i, QF + 8 * d + i))
        for row in range(4):
            e("v_cvt_pk_bf16_f32 v%d, v%d, v%d" % (O + 2 * row + d, Y + 8 * d + row, Y + 8 * d + 4 + row))
    def stores(fl):
        e("buffer_store_dwordx2 %s, v%d, s[24:27], 0 offen%s" % (vr(O, 2), VC_, fl))
        e("buffer_store_dwordx2 %s, v%d, s[24:27], 0 offen offset:2560%s" % (vr(O + 2, 2), VC_, fl))
        e("buffer_store_dwordx2 %s, v%d, s[24:27], 0 offen%s" % (vr(O + 4, 2), VD_, fl))
        e("buffer_store_dwordx2 %s, v%d, s[24:27], 0 offen offset:2560%s" % (vr(O + 6, 2), VD_, fl))
    if args.hst:
        if args.hst1:
            e("s_cmp_lt_u32 s46, 8")
        else:
            e("s_cmp_lg_u32 s89, 0")
        e("s_cbranch_scc1 L_sth")
        stores("")
        e("s_branch L_std")
        g.l("L_sth")
        stores(" " + args.hst)
        g.l("L_std")
    else:
        stores("")
    e("s_cmp_ge_u32 s46, 8")
    e("s_cbranch_scc1 L_io_done")
    e("s_add_u32 s46, s46, 8")
    if args.ioprio: e("s_setprio 1")
    e("s_branch L_ejob")
    g.l("L_io_done")
    if args.wb:
        e("s_lshl_b32 s7, s89, 3")
        e("s_add_u32 s7, s7, s3")
        e("s_cmp_eq_u32 s7, 15")
        e("s_cbranch_scc1 L_dowb")
        if args.wb >= 2:
            e("s_cmp_lg_u32 s7, 3")
            e("s_cbranch_scc1 L_nowb")
            e("s_and_b32 s7, s5, %d" % (args.wbm - 1))
            e("s_cmp_lg_u32 s7, 0")
            e("s_cbranch_scc1 L_nowb")
        else:
            e("s_branch L_nowb")
        g.l("L_dowb")
        if args.wbone:
            e("s_cmp_lg_u32 s5, %d" % args.wbone)
            e("s_cbranch_scc1 L_nowb")
        e("s_waitcnt vmcnt(0)")
        e("buffer_wbl2 %s" % args.wbfl)
        e("s_waitcnt vmcnt(0)")
        g.l("L_nowb")
    stamp_flush()
    e("s_endpgm")

    mark_mf = len(g.lines)
    g.l("L_mfma")
    e("s_sub_u32 s3, s3, 8")
    e("s_add_u32 s7, s10, s3")
    e("s_lshl_b32 s11, s7, 12")
    e("s_lshr_b32 s44, s7, 1")
    e("s_lshl_b32 s44, s44, 2")
    e("s_and_b32 s45, s7, 1")
    e("v_lshlrev_b32 v1, 4, v0")
    e("v_subrev_u32 v2, 4, v1")
    e("s_cmp_lg_u32 s89, 0")
    e("s_cselect_b32 s7, 32768, 0")
    e("s_cselect_b32 s22, 0, 2048")
    sel(23, HCP_H, HCP_M)
    sel(49, XCP_H, XCP_M)
    sel(50, 2 * HCP_H, 2048)
    e("v_add_u32 v3, s22, v1")
    e("v_subrev_u32 v4, 4, v3")
    e("s_waitcnt lgkmcnt(0)")
    stamp(0)
    e("s_add_u32 s12, s36, s11")
    e("s_addc_u32 s13, s37, 0")
    e("s_and_b32 s13, s13, 0xffff")
    e("s_mov_b32 s14, 4096")
    e("s_mov_b32 s15, 0x20000")
    e("s_add_u32 s16, s12, s7")
    e("s_addc_u32 s17, s13, 0")
    e("s_mov_b32 s18, 4096")
    e("s_mov_b32 s19, 0x20000")
    e("s_add_u32 s38, s38, s44")
    e("s_addc_u32 s39, s39, 0")
    e("s_load_dword s40, s[38:39], 0")
    e("s_cmp_lg_u32 s89, 0")
    e("s_cselect_b32 s7, 16, 0")
    e("s_load_dword s41, s[38:39], s7")
    def ipf():
        if not args.ipf: return
        e("s_cmp_ge_u32 s3, %d" % args.ipf)
        e("s_cbranch_scc1 L_noipf")
        e("s_cmp_ge_u32 s5, 24")
        e("s_cbranch_scc1 L_noipf")
        srd(52, 30, 2621440); srd(56, 32, 2621440)
        e("s_mul_i32 s46, s3, 24")
        e("s_add_u32 s46, s46, s5")
        pf_addr(80, 81, 82, 46, 512 * args.ipf0)
        e("buffer_load_dword v83, v80, s[52:55], 0 offen")
        e("buffer_load_dword v84, v80, s[56:59], 0 offen")
        g.l("L_noipf")
    ipf()
    def ipfh():
        if not args.ipfh: return
        e("s_cmp_ge_u32 s3, %d" % args.ipfh)
        e("s_cbranch_scc1 L_noipfh")
        e("s_cmp_eq_u32 s89, 0")
        e("s_cbranch_scc1 L_noipfh")
        srd(52, 30, 2621440); srd(56, 32, 2621440)
        e("s_mul_i32 s46, s3, 10")
        e("s_add_u32 s46, s46, s5")
        e("s_sub_u32 s46, s46, 20")
        pf_addr(80, 81, 82, 46, args.ipfh0)
        e("buffer_load_dword v83, v80, s[52:55], 0 offen")
        e("buffer_load_dword v84, v80, s[56:59], 0 offen")
        g.l("L_noipfh")
    ipfh()
    HD = 48; HM = 64
    order = (0, 1, 2, 3)
    if args.order3:
        e("s_setprio 3")
    elif args.order2:
        e("s_setprio 3")
        e("s_barrier")
    for b in order:
        S = "s[12:15]" if b < 2 else "s[16:19]"
        va = "v1" if b < 2 else "v3"
        e("buffer_load_dwordx4 %s, %s, %s, 0 offen offset:%d%s" % (vr(HD + 4 * b, 4), va, S, 1024 * (b & 1), NH))
    if args.order3:
        e("s_setprio 0")
    elif not args.order2:
        e("s_barrier")
    else:
        e("s_setprio 0")
    e("s_mul_i32 s20, s3, %d" % HSLOT)
    e("s_and_b32 s7, s3, 3")
    e("s_mul_i32 s21, s7, %d" % XCH)
    e("s_lshr_b32 s7, s3, 2")
    e("s_mul_i32 s7, s7, %d" % XG)
    e("s_add_u32 s21, s21, s7")
    e("s_add_u32 s21, s21, %d" % XB)
    for i in range(4):
        e("v_mov_b32 v%d, 0" % (4 + i))
    e("v_and_b32 v3, 31, v0")
    e("v_min_u32 v3, 27, v3")
    e("v_lshlrev_b32 v3, 4, v3")
    e("v_lshrrev_b32 v8, 5, v0")
    e("v_mul_u32_u24 v9, s23, v8")
    e("v_add3_u32 v3, v3, v9, s20")
    e("ds_write_b128 v3, v[4:7]")
    e("v_and_b32 v10, 31, v0")
    e("v_min_u32 v10, 16, v10")
    e("v_lshlrev_b32 v10, 2, v10")
    e("s_add_u32 s7, s49, 4")
    e("v_mul_u32_u24 v9, s7, v8")
    e("v_sub_u32 v10, v10, v9")
    e("s_lshl_b32 s7, s49, 1")
    e("s_add_u32 s7, s7, s21")
    e("s_add_u32 s7, s7, %d" % (X0OFF - 128))
    e("v_add_u32 v10, s7, v10")
    e("ds_write_b32 v10, v4")
    e("s_cmp_eq_u32 s89, 0")
    e("s_cbranch_scc1 L_nopad2")
    e("ds_write_b128 v3, v[4:7] offset:%d" % (2 * HCP_H))
    e("ds_write_b32 v10, v4 offset:%d" % XHALF)
    g.l("L_nopad2")
    VA = 1; VB = 2; VYW = 3
    e("v_add_u32 v40, s20, v1")
    e("v_add_u32 v46, s50, v40")
    e("v_add_u32 v47, s23, v40")
    e("v_add_u32 v76, s23, v46")
    e("v_and_b32 v41, 1, v0")
    e("v_xor_b32 v41, 1, v41")
    e("v_mul_u32_u24 v41, s23, v41")
    e("v_bfe_u32 v42, v0, 1, 3")
    e("v_lshlrev_b32 v42, 6, v42")
    e("v_lshrrev_b32 v43, 4, v0")
    e("v_lshlrev_b32 v44, 4, v43")
    e("v_add3_u32 v41, v41, v42, v44")
    e("v_add_u32 v%d, s20, v41" % VA)
    e("v_and_b32 v41, 1, v0")
    e("s_add_u32 s7, s49, 4")
    e("v_mul_u32_u24 v41, s7, v41")
    e("v_and_b32 v42, 15, v0")
    e("v_lshlrev_b32 v45, 2, v42")
    e("v_sub_u32 v41, v41, v45")
    e("v_add3_u32 v41, v41, v44, s21")
    e("v_add_u32 v%d, %d, v41" % (VB, X0OFF + 56))
    e("v_lshlrev_b32 v41, 8, v43")
    e("v_lshlrev_b32 v45, 3, v42")
    e("v_add3_u32 v41, v41, v45, s21")
    e("v_add_u32 v%d, %d, v41" % (VYW, X0OFF + 64))
    ACC = 8
    for i in range(32):
        e("v_mov_b32 v%d, 0" % (ACC + i))
    e("s_waitcnt lgkmcnt(0)")
    e("s_lshl_b32 s42, s40, 16")
    e("s_and_b32 s40, s40, 0xffff0000")
    e("s_lshl_b32 s43, s41, 16")
    e("s_and_b32 s41, s41, 0xffff0000")
    e("s_cmp_eq_u32 s45, 0")
    e("s_cselect_b32 s40, s42, s40")
    e("s_cselect_b32 s41, s43, s41")
    e("s_cmp_eq_u32 s89, 0")
    e("s_cselect_b32 s41, 0, s41")
    for n, b in enumerate(order):
        d = HD + 4 * b
        o = 68 + 4 * (n & 1)
        if b == 0:
            e("v_mov_b32 v%d, 0" % HM)
        else:
            e("v_readlane_b32 s46, v%d, 63" % (d - 1))
            if b == 2:
                e("s_cmp_eq_u32 s89, 0")
                e("s_cselect_b32 s46, s46, 0")
            else:
                e("s_nop 1")
            e("v_mov_b32 v%d, s46" % (HM + b))
        e("s_waitcnt vmcnt(%d)" % (3 - n))
        e("s_nop 0")
        e("v_mov_b32_dpp v%d, v%d wave_shr:1 row_mask:0xf bank_mask:0xf" % (HM + b, d + 3))
        if b in (0, 2):
            e("s_mov_b64 exec, 1")
            e("v_lshlrev_b32 v77, 16, v%d" % d)
            e("v_and_b32 v78, 0xffff0000, v%d" % d)
            e("v_add_f32 v77, s%d, v77" % (40 + (b >> 1)))
            e("v_cvt_pk_bf16_f32 v%d, v77, v78" % d)
            e("s_mov_b64 exec, -1")
        e("ds_write_b128 %s, %s offset:%d" % ("v40" if b < 2 else "v46", vr(d, 4), 448 + 1024 * (b & 1)))
        e("v_alignbit_b32 v%d, v%d, v%d, 16" % (o + 0, d + 0, HM + b))
        e("v_alignbit_b32 v%d, v%d, v%d, 16" % (o + 1, d + 1, d + 0))
        e("v_alignbit_b32 v%d, v%d, v%d, 16" % (o + 2, d + 2, d + 1))
        e("v_alignbit_b32 v%d, v%d, v%d, 16" % (o + 3, d + 3, d + 2))
        e("ds_write_b128 %s, %s offset:%d" % ("v47" if b < 2 else "v76", vr(o, 4), 448 + 1024 * (b & 1)))
    e("v_mov_b32 v4, %d" % CTL)
    e("v_mov_b32 v5, 1")
    e("s_waitcnt lgkmcnt(0)")
    stamp(1)
    if args.order3: e("s_barrier")
    e("s_cmp_lg_u32 s89, 0")
    e("s_cbranch_scc1 L_mfma_h")

    if args.layout:
        e("s_branch L_mfma_m")
        io = g.lines[mark_io:mark_mf]; mf = g.lines[mark_mf:]
        head = g.lines[:mark_io - 2] + ["    s_cmp_lt_u32 s3, 8", "    s_cbranch_scc1 L_io"]
        g.lines[:] = head + mf + ["L_io:"] + io + ["L_mfma_m:"]
    def wait_flags(blocks):
        lp = g.newlab("L_xwait")
        if args.poll1: e("s_mov_b64 exec, 1")
        g.l(lp)
        lo = blocks[0] & ~1
        n2 = (blocks[-1] - lo) // 2 + 1
        for i in range(n2):
            e("ds_read_b64 v[%d:%d], v4 offset:%d" % (120 + 2 * i, 121 + 2 * i, 4 * lo + 8 * i))
        e("s_waitcnt lgkmcnt(0)")
        r0 = 120 + blocks[0] - lo
        for b in blocks[1:]:
            e("v_and_b32 v%d, v%d, v%d" % (r0, r0, 120 + b - lo))
        e("s_nop 0")
        e("v_readfirstlane_b32 s7, v%d" % r0)
        e("s_bitcmp1_b32 s7, 2")
        e("s_cbranch_scc1 %s_done" % lp)
        e("s_sleep %d" % args.xsleep)
        e("s_branch %s" % lp)
        g.l(lp + "_done")
        if args.poll1: e("s_mov_b64 exec, -1")

    def front(steps, setbase, nregs, maxsets, waitfn, allA=False):
        if allA:
            nA = sum(1 for st in steps for r in st[0] if r[1] == 'A')
            bsz = 4 * max(sum(1 for r in st[0] if r[1] == 'B') for st in steps)
            nsets = min((nregs - 4 * nA) // bsz, len(steps) + 1)
            amap = {}; r = setbase
            for si, st in enumerate(steps):
                for (key, kind, ar, off) in st[0]:
                    if kind == 'A': amap[key] = r; r += 4
            bbase = r
            def regs(si, reads):
                m = {}; r = bbase + (si % nsets) * bsz
                for (key, kind, ar, off) in reads:
                    if kind == 'A': m[key] = amap[key]
                    else: m[key] = r; r += 4
                return m
        else:
            setsize = 4 * max(len(st[0]) for st in steps)
            nsets = min(nregs // setsize, maxsets, len(steps) + 1)
            def regs(si, reads):
                m = {}; r = setbase + (si % nsets) * setsize
                for (key, kind, ar, off) in reads:
                    m[key] = r; r += 4
                return m
        assert nsets >= 2
        LA = nsets - 1
        issued = []; pre = set()
        def rinstrs(si, kinds="AB"):
            reads = steps[si][0]; m = regs(si, reads); out = []
            for (key, kind, ar, off) in reads:
                if kind not in kinds or (si, key) in pre: continue
                if kind == 'A':
                    out.append(((si, key), "ds_read_b128 %s, v%d offset:%d" % (vr(m[key], 4), ar, off)))
                else:
                    out.append(((si, key), "ds_read_b64 %s, v%d offset:%d" % (vr(m[key], 2), ar, off)))
                    out.append(((si, key), "ds_read_b64 %s, v%d offset:%d" % (vr(m[key] + 2, 2), ar, off + 8)))
            return out
        done_upto = [0]
        def need(keys):
            keys = keys - pre
            if not keys: return
            last = max(i for i, k in enumerate(issued) if k in keys)
            if last < done_upto[0]: return
            n = min(len(issued) - 1 - last, 14)
            e("s_waitcnt lgkmcnt(%d)" % n)
            done_upto[0] = len(issued) - n
        if args.preA:
            for si in range(len(steps) if allA else min(LA, len(steps))):
                l_ = rinstrs(si, "A")
                for k, s_ in l_: e(s_)
                for k, s_ in l_: pre.add(k)
        waitfn()
        for si in range(min(LA, len(steps))):
            for k, s_ in rinstrs(si):
                e(s_); issued.append(k)
        for si, (reads, mf) in enumerate(steps):
            m = regs(si, reads)
            nxt = rinstrs(si + LA) if si + LA < len(steps) else []
            nm = len(mf); pos = 0
            for i, (acc, ka, kb) in enumerate(mf):
                need({(si, ka), (si, kb)})
                e("v_mfma_f32_16x16x32_bf16 %s, %s, %s, %s" % (vr(acc, 4), vr(m[ka], 4), vr(m[kb], 4), vr(acc, 4)))
                tgt = min(len(nxt), (len(nxt) * (i + 1) + nm - 1) // nm)
                while pos < tgt:
                    k, s_ = nxt[pos]; e(s_); issued.append(k); pos += 1

    def mk_steps(qs, rlo, rhi, nblk, aoff, boff, accbase, tag, skip7=(), add7=()):
        steps = []
        for t in range(8):
            qq = [q for q in qs if not (t == 7 and q in skip7)] + (list(add7) if t == 7 else [])
            units = [(p, q) for q in qq for p in range(nblk) if rlo <= p + q <= rhi]
            units.sort(key=lambda u: (u[0], u[1]))
            reads = []; seen = set()
            for (p, q) in units:
                for key in (('B', q, tag, t), ('A', p, tag, t)):
                    if key in seen: continue
                    seen.add(key)
                    if key[0] == 'A': reads.append((key, 'A', VA, aoff + 512 * p + 64 * t))
                    else: reads.append((key, 'B', VB, boff + 512 * (nblk - 1 - q) + 64 * t))
            mf = [(accbase + 4 * (p + q - rlo), ('A', p, tag, t), ('B', q, tag, t)) for (p, q) in units]
            if mf: steps.append((reads, mf))
        return steps
    def merge(steps, maxfr):
        out = []
        for s in steps:
            if out and len(out[-1][0]) + len(s[0]) <= maxfr:
                out[-1] = (out[-1][0] + s[0], out[-1][1] + s[1])
            else:
                out.append(s)
        return out

    def yout(accs, cnt_idx):
        e("s_nop 7")
        for (a, off) in accs:
            e("ds_write_b64 v%d, %s offset:%d" % (VYW, vr(a, 2), off))
            e("ds_write_b64 v%d, %s offset:%d" % (VYW, vr(a + 2, 2), off + 128))
        e("s_waitcnt lgkmcnt(0)")
        e("s_mov_b64 exec, 1")
        e("ds_add_u32 v4, v5 offset:%d" % (32 + 4 * cnt_idx))
        e("s_mov_b64 exec, -1")
        if args.wake:
            e("s_waitcnt lgkmcnt(0)")
            e("s_wakeup")

    fronts = [[int(c) for c in f] for f in args.mfronts.split(",")]
    sl = 2
    for fi, f in enumerate(fronts):
        if args.mprio: e("s_setprio %s" % args.mp[fi])
        def wf(f=f, sl=sl):
            wait_flags(f); stamp(sl)
        sl += 1
        before = set(q for ff in fronts[:fi] for q in ff); now = before | set(f)
        skip7 = tuple(q for q in f if q > 0 and (q - 1) not in now)
        add7 = tuple(q + 1 for q in f if (q + 1) in before)
        front(mk_steps(f, 4, 7, 8, 0, 0, ACC, 0, skip7=skip7, add7=add7), 24, 96, args.lastsets if fi == len(fronts) - 1 else args.maxsets, wf, allA=(args.preA >= 2 and fi == len(fronts) - 1))
        if set(range(6)) <= now and not set(range(6)) <= before:
            yout([(ACC, 1024), (ACC + 4, 1024 + XCP_M)], 2)
        if fi == len(fronts) - 1:
            yout([(ACC + 8, 0), (ACC + 12, XCP_M)], 3)
        stamp(sl); sl += 1
    stamp_flush()
    e("s_endpgm")

    g.l("L_mfma_h")
    hfronts = [[int(c) for c in f] for f in args.hfronts.split(",")]
    sl = 2
    for fi, f in enumerate(hfronts):
        if args.mprio: e("s_setprio %s" % args.hp[fi])
        def wf(f=f, sl=sl):
            wait_flags(f); stamp(sl)
        sl += 1
        s0 = mk_steps(f, 0, 3, 4, 0, 0, ACC, 0)
        s1 = mk_steps(f, 0, 3, 4, 2 * HCP_H, XHALF, ACC + 16, 1)
        steps = []
        for a, b in zip(s0, s1): steps += [a, b]
        front(steps, 40, 80, args.lastsets if fi == len(hfronts) - 1 else args.maxsets, wf)
        if 1 in f:
            yout([(ACC, 1024), (ACC + 4, 1024 + XCP_H), (ACC + 16, XHALF + 1024), (ACC + 20, XHALF + 1024 + XCP_H)], 0)
        if 3 in f:
            yout([(ACC + 8, 0), (ACC + 12, XCP_H), (ACC + 24, XHALF), (ACC + 28, XHALF + XCP_H)], 1)
        stamp(sl); sl += 1
    stamp_flush()
    e("s_endpgm")

    if args.pwg:
        g.l("L_pf")
        if args.wswap: e("s_xor_b32 s3, s3, 8")
        e("s_waitcnt lgkmcnt(0)")
        srd(12, 30, 2621440); srd(16, 32, 2621440); srd(20, 28, 2621440)
        e("s_lshl_b32 s46, s3, 1")
        e("s_add_u32 s46, s46, s5")
        e("s_sub_u32 s46, s46, 30")
        pf_addr(8, 9, 10, 46, 0)
        n = 20
        pf_addr(11, 9, 10, 3, 0)
        e("s_cmp_eq_u32 s5, 30")
        e("s_cselect_b32 s40, s12, s16")
        e("s_cselect_b32 s41, s13, s17")
        e("s_mov_b32 s42, 2621440")
        e("s_mov_b32 s43, 0x20000")
        for item in args.pprog.split(","):
            row = int(item[1:])
            e("s_mov_b32 s7, %d" % (row * 1280))
            if item[0] == "p":
                e("buffer_load_dword v%d, v11, s[40:43], s7 offen" % n); n += 1
            elif item[0] == "h":
                lp = g.newlab("L_ph")
                e("s_cmp_ge_u32 s3, 8")
                e("s_cbranch_scc1 %s" % lp)
                e("buffer_load_dword v%d, v11, s[40:43], s7 offen" % n); n += 1
                g.l(lp)
            else:
                t = {"k": "s[12:15]", "v": "s[16:19]", "q": "s[20:23]"}[item[0]]
                e("buffer_load_dword v%d, v8, %s, s7 offen" % (n, t)); n += 1
            e("s_barrier")
        e("s_waitcnt vmcnt(0)")
    g.l("L_end")
    e("s_endpgm")

    out = HEADER
    out += "; @launch grid=(%d,1,1) block=(1024,1,1) lds=%d\n" % (NWG, LDS_BYTES)
    out += DOC
    out += '.amdgcn_target "amdgcn-amd-amdhsa--gfx950"\n.text\n.globl %s_kernel\n.p2align 8\n.type %s_kernel,@function\n' % (NAME, NAME)
    out += "\n".join(g.lines) + "\n"
    out += '''.section .rodata,"a"
.p2align 6
.amdhsa_kernel %s_kernel
  .amdhsa_next_free_vgpr 128
  .amdhsa_next_free_sgpr 102
  .amdhsa_accum_offset 128
  .amdhsa_group_segment_fixed_size 0
  .amdhsa_kernarg_size 120
  .amdhsa_user_sgpr_count 2
  .amdhsa_user_sgpr_kernarg_segment_ptr 1
  .amdhsa_system_sgpr_workgroup_id_x 1
  .amdhsa_float_denorm_mode_32 3
.end_amdhsa_kernel
''' % NAME
    return out

if __name__ == "__main__":
    ap = argparse.ArgumentParser()
    ap.add_argument("-o", default="cdna_kernels/%s.s" % NAME)
    ap.add_argument("--pwg", type=int, default=1)
    ap.add_argument("--hpf", type=int, default=1)
    ap.add_argument("--kvfirst", type=int, default=0)
    ap.add_argument("--ipf", type=int, default=0)
    ap.add_argument("--kfl", default="")
    ap.add_argument("--vfl", default="")
    ap.add_argument("--mswap", type=int, default=0)
    ap.add_argument("--qearly", type=int, default=0)
    ap.add_argument("--qep", type=int, default=1)
    ap.add_argument("--ksplit", type=int, default=1)
    ap.add_argument("--hpf0", type=int, default=0)
    ap.add_argument("--hpf0w", type=int, default=4)
    ap.add_argument("--hpf0r", type=int, default=512)
    ap.add_argument("--wbone", type=int, default=0)
    ap.add_argument("--wbfl", default="sc1")
    ap.add_argument("--wake", type=int, default=0)
    ap.add_argument("--xsleep", type=int, default=1)
    ap.add_argument("--ysleep2", type=int, default=1)
    ap.add_argument("--hst", default="")
    ap.add_argument("--hst1", type=int, default=0)
    ap.add_argument("--wb", type=int, default=0)
    ap.add_argument("--wbm", type=int, default=4)
    ap.add_argument("--order3", type=int, default=1)
    ap.add_argument("--layout", type=int, default=1)
    ap.add_argument("--poll1", type=int, default=1)
    ap.add_argument("--ysleep", type=int, default=8)
    ap.add_argument("--hack", type=int, default=0)
    ap.add_argument("--rot", type=int, default=2)
    ap.add_argument("--qrot", type=int, default=1)
    ap.add_argument("--preA", type=int, default=2)
    ap.add_argument("--cpf", type=int, default=0)
    ap.add_argument("--ipfh", type=int, default=0)
    ap.add_argument("--ipfh0", type=int, default=512)
    ap.add_argument("--wswap", type=int, default=1)
    ap.add_argument("--ioprio", type=int, default=1)
    ap.add_argument("--mp", default="3210")
    ap.add_argument("--hp", default="10")
    ap.add_argument("--order2", type=int, default=0)
    ap.add_argument("--lastsets", type=int, default=2)
    ap.add_argument("--ipf0", type=int, default=1)
    ap.add_argument("--pprog", default="k1024,v1024,q1024,q1706")
    ap.add_argument("--stamp", type=int, default=0)
    ap.add_argument("--nth", type=int, default=0)
    ap.add_argument("--horder", type=int, default=0)
    ap.add_argument("--maxsets", type=int, default=2)
    ap.add_argument("--mprio", type=int, default=1)
    ap.add_argument("--mfronts", default="01,23,45,67")
    ap.add_argument("--hfronts", default="01,23")
    a = ap.parse_args()
    open(a.o, "w").write(build(a))
    print("wrote", a.o, "LDS", LDS_BYTES)
```

```python
import sys, argparse

NAME = "concat_heads__ssm_conv_h3__ssm_conv_h3__prompt"
HEADER = open("cdna_kernels/%s.s.ref" % NAME).read().split("; Override launch geometry")[0]

HCP_M = 4576; HCP_H = 2528
HSLOT = 4 * HCP_H
XB = 8 * HSLOT
XCH = 8960
XG = 4 * XCH + 64
XHALF = 4384
XCP_M = 4224; XCP_H = 2176
X0OFF = 16
CTL = XB + 8 * XCH + 128
LDS_BYTES = CTL + 128

DOC = """;
"""

class Gen:
    def __init__(self):
        self.lines = []; self.lab = 0
    def e(self, s): self.lines.append("    " + s)
    def l(self, s): self.lines.append(s + ":")
    def newlab(self, p="L"):
        self.lab += 1
        return "%s_%d" % (p, self.lab)

def vr(b, n=1):
    return "v%d" % b if n == 1 else "v[%d:%d]" % (b, b + n - 1)

def build(args):
    g = Gen(); e = g.e
    STAMP = args.stamp
    NH = " nt" if args.nth else ""
    def stamp(slot):
        if not STAMP: return
        if STAMP == 2 and slot != 0: return
        if slot == 0:
            e("v_writelane_b32 v127, s98, 0"); return
        e("s_memtime s[90:91]" if STAMP == 3 else "s_memrealtime s[90:91]")
        e("s_waitcnt lgkmcnt(0)")
        if isinstance(slot, str):
            e("s_mov_b32 m0, %s" % slot); e("s_nop 0")
            e("v_writelane_b32 v127, s90, m0")
        else:
            e("v_writelane_b32 v127, s90, %s" % slot)
    def stamp_flush():
        if not STAMP: return
        e("s_waitcnt vmcnt(0)")
        e("s_memtime s[90:91]" if STAMP == 3 else "s_memrealtime s[90:91]")
        e("s_waitcnt lgkmcnt(0)")
        e("v_writelane_b32 v127, s90, 15")
        e("v_lshlrev_b32 v126, 2, v0")
        e("v_add_u32 v126, s96, v126")
        e("s_mov_b64 exec, 0xffff")
        e("buffer_store_dword v127, v126, s[92:95], 0 offen")
    def srd(d, p, n):
        if d != p: e("s_mov_b32 s%d, s%d" % (d, p))
        e("s_and_b32 s%d, s%d, 0xffff" % (d + 1, p + 1))
        e("s_mov_b32 s%d, %d" % (d + 2, n))
        e("s_mov_b32 s%d, 0x20000" % (d + 3))
    def sel(d, a, b):
        e("s_mov_b32 s%d, %d" % (d, b))
        e("s_cmov_b32 s%d, %d" % (d, a))

    def pf_addr(dst, t1, t2, sidx, rowbase_rows):
        e("s_lshl_b32 s7, s%d, 6" % sidx)
        e("v_add_u32 v%d, s7, v0" % dst)
        e("s_mov_b32 s7, 0xAAAB")
        e("v_mul_u32_u24 v%d, s7, v%d" % (t1, dst))
        e("v_lshrrev_b32 v%d, 17, v%d" % (t1, t1))
        e("v_mul_u32_u24 v%d, 3, v%d" % (t2, t1))
        e("v_sub_u32 v%d, v%d, v%d" % (t2, dst, t2))
        e("v_mul_u32_u24 v%d, 1280, v%d" % (t1, t1))
        e("v_lshlrev_b32 v%d, 7, v%d" % (t2, t2))
        e("s_add_u32 s7, s88, %d" % (rowbase_rows * 1280))
        e("v_add3_u32 v%d, v%d, v%d, s7" % (dst, t1, t2))
    NWG = 256 if args.pwg else 240
    g.l(NAME + "_kernel")
    if STAMP: e("s_memtime s[98:99]" if STAMP == 3 else "s_memrealtime s[98:99]")
    e("s_cmp_ge_u32 s2, %d" % NWG)
    e("s_cbranch_scc1 L_end")
    e("v_lshrrev_b32 v1, 6, v0")
    e("s_and_b32 s4, s2, 7")
    e("s_lshr_b32 s5, s2, 3")
    e("v_readfirstlane_b32 s3, v1")
    e("v_and_b32 v0, 63, v0")
    if args.wswap:
        e("s_xor_b32 s3, s3, 8")
    e("s_lshr_b32 s6, s4, 2")
    e("s_mul_i32 s7, s6, 48")
    e("s_add_u32 s8, s0, s7")
    e("s_addc_u32 s9, s1, 0")
    e("s_load_dwordx4 s[28:31], s[8:9], 0")
    e("s_load_dwordx4 s[32:35], s[8:9], 16")
    e("s_load_dwordx4 s[36:39], s[8:9], 32")
    e("s_load_dwordx2 s[24:25], s[0:1], 96")
    if args.cpf:
        e("s_cmp_lg_u32 s3, %d" % (8 if args.wswap else 0))
        e("s_cbranch_scc1 L_nocpf")
        e("s_getpc_b64 s[40:41]")
        g.l("L_pc")
        e("s_sub_u32 s40, s40, L_pc-%s_kernel" % NAME)
        e("s_subb_u32 s41, s41, 0")
        if args.cpf == 1:
            e("s_lshl_b32 s7, s5, 9")
            e("v_lshlrev_b32 v100, 7, v0")
            e("v_add_u32 v100, s7, v100")
            e("v_min_u32 v100, L_end-%s_kernel, v100" % NAME)
            e("s_mov_b64 exec, 15")
            e("global_load_dword v101, v100, s[40:41]")
            e("s_mov_b64 exec, -1")
        else:
            e("s_cmp_ge_u32 s5, 2")
            e("s_cbranch_scc1 L_nocpf")
            e("s_lshl_b32 s7, s5, 13")
            e("v_lshlrev_b32 v100, 7, v0")
            e("v_add_u32 v100, s7, v100")
            e("v_min_u32 v100, L_end-%s_kernel, v100" % NAME)
            e("global_load_dword v101, v100, s[40:41]")
        g.l("L_nocpf")
    if STAMP:
        e("s_load_dwordx2 s[92:93], s[0:1], 112")
        e("s_mov_b32 s94, 0x1000000")
        e("s_mov_b32 s95, 0x20000")
        e("s_lshl_b32 s96, s2, 4")
        e("s_add_u32 s96, s96, s3")
        e("s_lshl_b32 s96, s96, 6")
        e("v_mov_b32 v127, 0")
    e("s_and_b32 s7, s4, 3")
    e("s_mul_i32 s7, s7, 160")
    e("s_lshl_b32 s10, s5, 3")
    e("s_lshl_b32 s11, s5, 4")
    e("s_sub_u32 s11, s11, 320")
    e("s_cmp_ge_u32 s5, 20")
    e("s_cselect_b32 s10, s11, s10")
    e("s_cselect_b32 s89, 1, 0")
    e("s_add_u32 s10, s10, s7")
    e("s_lshl_b32 s88, s7, 1")
    e("s_and_b32 s88, s88, 0xffffff80")
    if args.pwg:
        e("s_cmp_ge_u32 s5, 30")
        e("s_cbranch_scc1 L_pf")
    e("v_lshlrev_b32 v1, 2, v0")
    e("v_and_b32 v1, 124, v1")
    e("v_add_u32 v1, %d, v1" % CTL)
    e("v_mov_b32 v2, 0")
    e("ds_write_b32 v1, v2")
    e("s_cmp_ge_u32 s3, 8")
    e("s_cbranch_scc1 L_mfma")
    mark_io = len(g.lines)

    VL = 1
    VO = 2
    VXL = 3
    VYL = 4
    VA_ = 5; VB_ = 6; VC_ = 7; VD_ = 8
    WP = 10
    W = 18
    K = 34
    V = 48
    T = 56
    XP = 86
    Q = 94
    QF = 102
    e("s_setprio 3")
    e("s_cmp_lg_u32 s89, 0")
    e("s_cselect_b32 s40, 2, 1")
    sel(41, 64, 128)
    sel(42, 0x000F000F, 0x00030003)
    e("s_mov_b32 s43, s42")
    sel(49, XCP_H, XCP_M)
    sel(50, XB + X0OFF + XCP_H + 2040, XB + X0OFF + XCP_M + 4088)
    e("s_cselect_b32 s44, 1, 2")
    e("s_cselect_b32 s45, 3, 1")
    e("v_lshrrev_b32 v%d, s40, v0" % VA_)
    e("v_and_b32 v%d, s45, v0" % VB_)
    e("v_mul_u32_u24 v%d, 5120, v%d" % (VL, VA_))
    e("v_lshlrev_b32 v%d, 3, v%d" % (VC_, VB_))
    e("s_lshl_b32 s7, s10, 1")
    e("v_add3_u32 v%d, v%d, v%d, s7" % (VL, VL, VC_))
    e("v_lshlrev_b32 v%d, 5, v%d" % (VD_, VB_))
    e("s_lshl_b32 s7, s10, 3")
    e("v_add_u32 v%d, s7, v%d" % (VD_, VD_))
    e("s_waitcnt lgkmcnt(0)")
    stamp(0)
    srd(12, 30, 2621440); srd(16, 32, 2621440); srd(20, 28, 2621440); srd(52, 34, 5120)
    if args.order3:
        e("s_cmp_lt_u32 s3, 4")
        e("s_cbranch_scc1 L_nobar1")
        e("s_barrier")
        g.l("L_nobar1")
    elif args.order2:
        e("s_cmp_lt_u32 s3, %d" % args.order2)
        e("s_cbranch_scc1 L_nobar1")
        e("s_setprio 2")
        e("s_barrier")
        g.l("L_nobar1")
    elif not args.kvfirst:
        e("s_barrier")
    e("buffer_load_dwordx4 %s, v%d, s[52:55], 0 offen" % (vr(WP, 4), VD_))
    e("buffer_load_dwordx4 %s, v%d, s[52:55], 0 offen offset:16" % (vr(WP + 4, 4), VD_))
    def rotated(seq, nrot):
        if nrot <= 1:
            for x in seq: e(x)
            return
        lp = g.newlab("L_rot")
        step = len(seq) // nrot
        e("s_and_b32 s7, s5, %d" % (nrot - 1))
        for j in range(1, nrot):
            e("s_cmp_eq_u32 s7, %d" % j)
            e("s_cbranch_scc1 %s_%d" % (lp, j))
        for j in range(nrot):
            if j: g.l("%s_%d" % (lp, j))
            for x in seq[j * step:] + seq[:j * step]: e(x)
            if j < nrot - 1: e("s_branch %s_end" % lp)
        g.l(lp + "_end")
    def issue_kv(chunk_sgpr):
        e("s_mul_i32 s7, s%d, s41" % chunk_sgpr)
        e("s_mul_i32 s7, s7, 1280")
        e("v_add_u32 v%d, s7, v%d" % (VC_, VL))
        e("v_subrev_u32 v%d, 3840, v%d" % (VD_, VC_))
        ks = ["buffer_load_dwordx2 %s, v%d, s[12:15], 0 offen offset:%d%s" % (vr(K + 6 + 2 * r, 2), VC_, 1280 * r, args.kfl) for r in range(4)]
        vs = ["buffer_load_dwordx2 %s, v%d, s[16:19], 0 offen offset:%d%s" % (vr(V + 2 * r, 2), VC_, 1280 * r, args.vfl) for r in range(4)]
        halo = ["s_mov_b64 exec, s[42:43]"] + ["buffer_load_dwordx2 %s, v%d, s[12:15], 0 offen offset:%d" % (vr(K + 2 * r, 2), VD_, 1280 * r) for r in range(3)] + ["s_mov_b64 exec, -1"]
        if args.ksplit:
            nrot = args.rot; lp = g.newlab("L_rot"); step = 4 // nrot
            if nrot > 1:
                e("s_and_b32 s7, s5, %d" % (nrot - 1))
                for j in range(1, nrot):
                    e("s_cmp_eq_u32 s7, %d" % j)
                    e("s_cbranch_scc1 %s_%d" % (lp, j))
            for j in range(nrot):
                if j: g.l("%s_%d" % (lp, j))
                for x in ks[j * step:] + ks[:j * step] + halo + vs[j * step:] + vs[:j * step]: e(x)
                if j < nrot - 1: e("s_branch %s_end" % lp)
            g.l(lp + "_end")
        else:
            seq = []
            for r in range(4): seq += [ks[r], vs[r]]
            rotated(seq, args.rot)
            for x in halo: e(x)
    e("s_mov_b32 s46, s3")
    if args.mswap:
        e("s_xor_b32 s7, s3, 4")
        e("s_cmp_eq_u32 s89, 0")
        e("s_cselect_b32 s46, s7, s3")
    issue_kv(46)
    if args.order3:
        e("s_cmp_ge_u32 s3, 4")
        e("s_cbranch_scc1 L_nobar2")
        e("s_barrier")
        g.l("L_nobar2")
    elif args.order2:
        e("s_cmp_ge_u32 s3, %d" % args.order2)
        e("s_cbranch_scc1 L_nobar2")
        e("s_barrier")
        g.l("L_nobar2")
        e("s_setprio 3")
    elif args.kvfirst:
        e("s_barrier")
    e("s_mov_b32 s58, 0")
    if args.hpf0:
        e("s_cmp_eq_u32 s89, 0")
        e("s_cbranch_scc1 L_nohpf0")
        e("s_cmp_lt_u32 s3, %d" % args.hpf0w)
        e("s_cbranch_scc1 L_nohpf0")
        e("s_sub_u32 s56, s3, %d" % args.hpf0w)
        e("s_mul_i32 s56, s56, 10")
        e("s_add_u32 s56, s56, s5")
        e("s_sub_u32 s56, s56, 20")
        e("s_cmp_ge_u32 s56, %d" % args.hpf0)
        e("s_cbranch_scc1 L_nohpf0")
        pf_addr(Q, Q + 1, Q + 2, 56, args.hpf0r)
        e("buffer_load_dword v%d, v%d, s[12:15], 0 offen" % (Q + 3, Q))
        e("buffer_load_dword v%d, v%d, s[16:19], 0 offen" % (Q + 4, Q))
        e("buffer_load_dword v%d, v%d, s[16:19], 0 offen" % (Q + 5, Q))
        e("s_mov_b32 s58, 2")
        g.l("L_nohpf0")
    stamp(1)
    srd(24, 24, 5242880)
    e("v_mul_u32_u24 v%d, 10240, v%d" % (VO, VA_))
    e("s_mul_i32 s7, s6, 1280")
    e("s_lshl_b32 s11, s10, 1")
    e("s_add_u32 s7, s7, s11")
    e("v_lshlrev_b32 v%d, 3, v%d" % (T, VB_))
    e("v_add3_u32 v%d, v%d, v%d, s7" % (VO, VO, T))
    e("v_and_b32 v%d, 1, v%d" % (T, VB_))
    e("v_mul_u32_u24 v%d, %d, v%d" % (T, XG, T))
    e("v_lshrrev_b32 v%d, 1, v%d" % (T + 1, VB_))
    e("v_mul_u32_u24 v%d, %d, v%d" % (T + 1, XHALF, T + 1))
    e("v_add_u32 v%d, v%d, v%d" % (T, T, T + 1))
    e("v_lshlrev_b32 v%d, 3, v%d" % (T + 1, VA_))
    e("v_sub_u32 v%d, v%d, v%d" % (VXL, T, T + 1))
    e("v_add_u32 v%d, s50, v%d" % (VXL, VXL))
    e("v_lshlrev_b32 v%d, 4, v%d" % (T + 1, VA_))
    e("v_add_u32 v%d, v%d, v%d" % (VYL, T, T + 1))
    e("v_add_u32 v%d, %d, v%d" % (VYL, XB + X0OFF + 64, VYL))
    e("s_mov_b32 s48, 0xffff0000")
    e("s_waitcnt vmcnt(11)")
    for i in range(4):
        e("v_lshlrev_b32 v%d, 16, v%d" % (W + 4 * i + 0, WP + 2 * i))
        e("v_and_b32 v%d, s48, v%d" % (W + 4 * i + 1, WP + 2 * i))
        e("v_lshlrev_b32 v%d, 16, v%d" % (W + 4 * i + 2, WP + 2 * i + 1))
        e("v_and_b32 v%d, s48, v%d" % (W + 4 * i + 3, WP + 2 * i + 1))
    e("s_mov_b32 s47, 0")
    g.l("L_xjob")
    e("s_mul_i32 s7, s46, s41")
    e("s_lshl_b32 s11, s7, 1")
    e("v_subrev_u32 v%d, s11, v%d" % (VA_, VXL))
    e("v_subrev_u32 v%d, s49, v%d" % (VB_, VA_))
    e("v_subrev_u32 v%d, 4, v%d" % (9, VB_))
    e("s_lshr_b32 s7, s7, 8")
    e("s_lshl_b32 s7, s7, 2")
    e("s_add_u32 s51, s7, %d" % CTL)
    KS = 4 if args.ksplit else 0
    EX = 4 if args.qearly else 3
    e("s_or_b32 s59, s47, s58")
    e("s_mov_b32 s58, 0")
    def wait_kv(n, tag):
        e("s_waitcnt vmcnt(%d)" % (n + EX))
        e("s_cmp_eq_u32 s59, 2")
        e("s_cbranch_scc1 %s" % tag)
        e("s_waitcnt vmcnt(%d)" % n)
        g.l(tag)
    wait_kv(KS, "L_w1")
    if args.ioprio: e("s_setprio 3")
    if STAMP == 1 or STAMP == 3:
        e("s_min_u32 s97, s47, 1"); e("s_lshl_b32 s97, s97, 1"); e("s_add_u32 s97, s97, 2"); stamp("s97")
    e("s_cmp_lg_u32 s89, 0")
    e("s_cbranch_scc1 L_dpp_h")
    for r in range(3):
        for d in range(2):
            e("v_mov_b32_dpp v%d, v%d row_shr:2 row_mask:0xf bank_mask:0xf" % (K + 2 * r + d, K + 2 * (r + 4) + d))
    e("s_branch L_dpp_done")
    g.l("L_dpp_h")
    for r in range(3):
        for d in range(2):
            e("v_mov_b32_dpp v%d, v%d row_shr:4 row_mask:0xf bank_mask:0xf" % (K + 2 * r + d, K + 2 * (r + 4) + d))
    g.l("L_dpp_done")
    def kpart(d, A):
        for r in (3, 4, 5, 6, 0, 1, 2):
            e("v_lshlrev_b32 v%d, 16, v%d" % (T + r, K + 2 * r + d))
            e("v_and_b32 v%d, s48, v%d" % (T + 7 + r, K + 2 * r + d))
        for h in range(2):
            c = 2 * d + h
            for row in range(4):
                e("v_mul_f32 v%d, v%d, v%d" % (A + h * 4 + row, W + 4 * c + 3, T + 7 * h + row))
            for j in (2, 1, 0):
                for row in range(4):
                    e("v_fmac_f32 v%d, v%d, v%d" % (A + h * 4 + row, W + 4 * c + j, T + 7 * h + row + 3 - j))
    def vpart(d, A, U):
        for row in range(4):
            e("v_lshlrev_b32 v%d, 16, v%d" % (U + row, V + 2 * row + d))
            e("v_and_b32 v%d, s48, v%d" % (U + 4 + row, V + 2 * row + d))
        for i in range(8):
            e("v_mul_f32 v%d, v%d, v%d" % (A + i, A + i, U + i))
        for h in range(2):
            c = 2 * d + h
            e("v_cvt_pk_bf16_f32 v%d, v%d, v%d" % (XP + 2 * c, A + h * 4 + 3, A + h * 4 + 2))
            e("v_cvt_pk_bf16_f32 v%d, v%d, v%d" % (XP + 2 * c + 1, A + h * 4 + 1, A + h * 4 + 0))
        for h in range(2):
            c = 2 * d + h
            e("ds_write_b64 v%d, %s offset:%d" % (VA_, vr(XP + 2 * c, 2), c * XCH))
        c = 2 * d
        e("ds_write2st64_b32 v9, v%d, v%d offset0:%d offset1:%d" % (XP + 2 * c, XP + 2 * c + 2, 35 * c, 35 * (c + 1)))
        e("ds_write2st64_b32 v%d, v%d, v%d offset0:%d offset1:%d" % (VB_, XP + 2 * c + 1, XP + 2 * c + 3, 35 * c, 35 * (c + 1)))
    if args.ksplit:
        kpart(0, T + 14); kpart(1, T + 22)
        wait_kv(0, "L_w2")
        vpart(0, T + 14, T); vpart(1, T + 22, T)
    else:
        for d in range(2):
            kpart(d, T + 14); vpart(d, T + 14, T + 22)
    e("v_mov_b32 v%d, s51" % T)
    e("v_mov_b32 v%d, s44" % (T + 1))
    if not args.nowait: e("s_waitcnt lgkmcnt(0)")
    e("s_mov_b64 exec, 1")
    e("ds_add_u32 v%d, v%d" % (T, T + 1))
    e("s_mov_b64 exec, -1")
    if args.wake:
        e("s_waitcnt lgkmcnt(0)")
        e("s_wakeup")
    if STAMP == 1 or STAMP == 3:
        e("s_add_u32 s97, s97, 1"); stamp("s97")
    e("s_cmp_lg_u32 s47, 0")
    e("s_cbranch_scc1 L_xdone")
    if args.hack:
        e("s_cmp_lg_u32 s89, 0")
        e("s_cbranch_scc1 L_nohack")
        e("s_mov_b64 exec, 1")
        e("ds_add_u32 v%d, v%d offset:16" % (T, T + 1))
        e("s_mov_b64 exec, -1")
        e("s_branch L_xdone")
        g.l("L_nohack")
    e("s_mov_b32 s47, 1")
    e("s_setprio 2")
    e("s_add_u32 s46, s3, 8")
    issue_kv(46)
    if args.hpf:
        e("s_cmp_lt_u32 s3, 4")
        e("s_cbranch_scc1 L_xjob")
        e("s_cmp_eq_u32 s89, 0")
        e("s_cbranch_scc1 %s" % ("L_mq" if args.qearly else "L_xjob"))
        e("s_mul_i32 s56, s3, 10")
        e("s_add_u32 s56, s56, s5")
        e("s_sub_u32 s56, s56, 60")
        e("s_mov_b32 s47, 2")
        e("s_cmp_ge_u32 s56, 24")
        e("s_cbranch_scc1 L_hpf_q")
        pf_addr(Q, Q + 1, Q + 2, 56, 1536)
        e("buffer_load_dword v%d, v%d, s[12:15], 0 offen" % (Q + 3, Q))
        e("buffer_load_dword v%d, v%d, s[16:19], 0 offen" % (Q + 4, Q))
        if args.qearly == 2:
            e("buffer_load_dword v%d, v%d, s[20:23], 0 offen" % (Q + 5, Q))
            e("v_subrev_u32 v%d, %d, v%d" % (Q + 1, 512 * 1280, Q))
            e("buffer_load_dword v%d, v%d, s[20:23], 0 offen" % (Q + 6, Q + 1))
        else:
            e("s_mov_b64 exec, 1")
            e("buffer_load_dword v%d, v%d, s[16:19], 0 offen" % (Q + 5, Q))
            if args.qearly: e("buffer_load_dword v%d, v%d, s[16:19], 0 offen" % (Q + 6, Q))
            e("s_mov_b64 exec, -1")
        e("s_branch L_xjob")
        g.l("L_hpf_q")
        e("s_sub_u32 s56, s56, 24")
        pf_addr(Q, Q + 1, Q + 2, 56, 0)
        e("s_mov_b32 s7, %d" % (1024 // 3 * 1280))
        e("buffer_load_dword v%d, v%d, s[20:23], 0 offen" % (Q + 3, Q))
        e("buffer_load_dword v%d, v%d, s[20:23], s7 offen" % (Q + 4, Q))
        e("s_mov_b32 s7, %d" % (2048 // 3 * 1280))
        e("buffer_load_dword v%d, v%d, s[20:23], s7 offen" % (Q + 5, Q))
        if args.qearly:
            e("s_mov_b64 exec, 1")
            e("buffer_load_dword v%d, v%d, s[20:23], s7 offen" % (Q + 6, Q))
            e("s_mov_b64 exec, -1")
            e("s_branch L_xjob")
            g.l("L_mq")
            e("s_mov_b32 s47, 2")
            e("s_setprio %d" % args.qep)
            for r in range(4):
                e("buffer_load_dwordx2 %s, v%d, s[20:23], 0 offen offset:%d" % (vr(Q + 2 * r, 2), VC_, 1280 * r))
    e("s_branch L_xjob")
    g.l("L_xdone")
    e("s_setprio 1")
    e("s_add_u32 s7, s3, 8")
    e("s_cmp_lg_u32 s89, 0")
    e("s_cselect_b32 s46, s3, s7")
    if args.t6: e("s_cselect_b32 s60, 0, 2048")
    g.l("L_ejob")
    e("s_mul_i32 s56, s46, s41")
    if args.qearly:
        e("s_lshl_b32 s7, s89, 2")
        e("s_or_b32 s7, s7, s47")
        e("s_cmp_eq_u32 s7, 2")
        e("s_cbranch_scc1 L_qskip")
    e("s_mul_i32 s7, s56, 1280")
    e("v_add_u32 v%d, s7, v%d" % (VC_, VL))
    rotated(["buffer_load_dwordx2 %s, v%d, s[20:23], 0 offen offset:%d" % (vr(Q + 2 * r, 2), VC_, 1280 * r) for r in range(4)], args.qrot)
    g.l("L_qskip")
    e("s_mul_i32 s7, s56, 2560")
    e("v_add_u32 v%d, s7, v%d" % (VC_, VO))
    e("v_add_u32 v%d, 5120, v%d" % (VD_, VC_))
    e("s_and_b32 s7, s56, 255")
    e("s_lshl_b32 s7, s7, 2")
    e("s_bitcmp1_b32 s56, 8")
    e("s_cselect_b32 s11, s49, 0")
    e("s_add_u32 s7, s7, s11")
    e("s_bitcmp1_b32 s56, 9")
    if args.t6:
        e("s_cselect_b32 s11, s60, 1024")
    else:
        e("s_cselect_b32 s11, 0, 1024")
    e("s_add_u32 s7, s7, s11")
    e("v_add_u32 v%d, s7, v%d" % (VA_, VYL))
    e("s_lshr_b32 s7, s56, %d" % (8 if args.t6 else 9))
    e("s_lshl_b32 s7, s7, 2")
    e("s_add_u32 s7, s7, %d" % (CTL + 32))
    e("v_mov_b32 v%d, s7" % VB_)
    e("s_waitcnt vmcnt(0)")
    if args.ioprio: e("s_setprio 3")
    if STAMP == 1 or STAMP == 3:
        e("s_add_u32 s97, s97, 1"); stamp("s97")
    for row in range(4):
        for d in range(2):
            e("v_lshlrev_b32 v%d, 16, v%d" % (QF + 4 * (2 * d) + row, Q + 2 * row + d))
            e("v_and_b32 v%d, s48, v%d" % (QF + 4 * (2 * d + 1) + row, Q + 2 * row + d))
    lp = g.newlab("L_ywait")
    if args.poll1: e("s_mov_b64 exec, 1")
    g.l(lp)
    e("ds_read_b32 v%d, v%d" % (T, VB_))
    e("s_waitcnt lgkmcnt(0)")
    e("v_readfirstlane_b32 s7, v%d" % T)
    e("s_cmp_ge_u32 s7, 8")
    e("s_cbranch_scc1 %s_done" % lp)
    if args.poll1:
        e("s_cmp_lg_u32 s7, 0")
        e("s_cbranch_scc1 %s_s" % lp)
        e("s_sleep %d" % args.ysleep)
        g.l(lp + "_s")
    e("s_sleep %d" % args.ysleep2)
    e("s_branch %s" % lp)
    g.l(lp + "_done")
    if args.poll1: e("s_mov_b64 exec, -1")
    if STAMP == 1 or STAMP == 3:
        e("s_add_u32 s97, s97, 1"); stamp("s97")
    Y = T
    O = T + 16
    for c in range(4):
        e("ds_read_b128 %s, v%d offset:%d" % (vr(Y + 4 * c, 4), VA_, c * XCH))
    for d in range(2):
        e("s_waitcnt lgkmcnt(%d)" % (2 - 2 * d))
        for i in range(8):
            e("v_mul_f32 v%d, v%d, v%d" % (Y + 8 * d + i, Y + 8 * d + i, QF + 8 * d + i))
        for row in range(4):
            e("v_cvt_pk_bf16_f32 v%d, v%d, v%d" % (O + 2 * row + d, Y + 8 * d + row, Y + 8 * d + 4 + row))
    def stores(fl):
        e("buffer_store_dwordx2 %s, v%d, s[24:27], 0 offen%s" % (vr(O, 2), VC_, fl))
        e("buffer_store_dwordx2 %s, v%d, s[24:27], 0 offen offset:2560%s" % (vr(O + 2, 2), VC_, fl))
        e("buffer_store_dwordx2 %s, v%d, s[24:27], 0 offen%s" % (vr(O + 4, 2), VD_, fl))
        e("buffer_store_dwordx2 %s, v%d, s[24:27], 0 offen offset:2560%s" % (vr(O + 6, 2), VD_, fl))
    if args.hst:
        if args.hst1:
            e("s_cmp_lt_u32 s46, 8")
        else:
            e("s_cmp_lg_u32 s89, 0")
        e("s_cbranch_scc1 L_sth")
        stores("")
        e("s_branch L_std")
        g.l("L_sth")
        stores(" " + args.hst)
        g.l("L_std")
    else:
        stores("")
    e("s_cmp_ge_u32 s46, 8")
    e("s_cbranch_scc1 L_io_done")
    e("s_add_u32 s46, s46, 8")
    if args.ioprio: e("s_setprio 1")
    e("s_branch L_ejob")
    g.l("L_io_done")
    if args.wb:
        e("s_lshl_b32 s7, s89, 3")
        e("s_add_u32 s7, s7, s3")
        e("s_cmp_eq_u32 s7, 15")
        e("s_cbranch_scc1 L_dowb")
        if args.wb >= 2:
            e("s_cmp_lg_u32 s7, 3")
            e("s_cbranch_scc1 L_nowb")
            e("s_and_b32 s7, s5, %d" % (args.wbm - 1))
            e("s_cmp_lg_u32 s7, 0")
            e("s_cbranch_scc1 L_nowb")
        else:
            e("s_branch L_nowb")
        g.l("L_dowb")
        if args.wbone:
            e("s_cmp_lg_u32 s5, %d" % args.wbone)
            e("s_cbranch_scc1 L_nowb")
        e("s_waitcnt vmcnt(0)")
        e("buffer_wbl2 %s" % args.wbfl)
        e("s_waitcnt vmcnt(0)")
        g.l("L_nowb")
    stamp_flush()
    e("s_endpgm")

    mark_mf = len(g.lines)
    g.l("L_mfma")
    e("s_sub_u32 s3, s3, 8")
    e("s_add_u32 s7, s10, s3")
    e("s_lshl_b32 s11, s7, 12")
    e("s_lshr_b32 s44, s7, 1")
    e("s_lshl_b32 s44, s44, 2")
    e("s_and_b32 s45, s7, 1")
    e("v_lshlrev_b32 v1, 4, v0")
    e("v_subrev_u32 v2, 4, v1")
    e("s_cmp_lg_u32 s89, 0")
    e("s_cselect_b32 s7, 32768, 0")
    e("s_cselect_b32 s22, 0, 2048")
    sel(23, HCP_H, HCP_M)
    sel(49, XCP_H, XCP_M)
    sel(50, 2 * HCP_H, 2048)
    e("v_add_u32 v3, s22, v1")
    e("v_subrev_u32 v4, 4, v3")
    e("s_waitcnt lgkmcnt(0)")
    stamp(0)
    e("s_add_u32 s12, s36, s11")
    e("s_addc_u32 s13, s37, 0")
    e("s_and_b32 s13, s13, 0xffff")
    e("s_mov_b32 s14, 4096")
    e("s_mov_b32 s15, 0x20000")
    e("s_add_u32 s16, s12, s7")
    e("s_addc_u32 s17, s13, 0")
    e("s_mov_b32 s18, 4096")
    e("s_mov_b32 s19, 0x20000")
    e("s_add_u32 s38, s38, s44")
    e("s_addc_u32 s39, s39, 0")
    e("s_load_dword s40, s[38:39], 0")
    e("s_cmp_lg_u32 s89, 0")
    e("s_cselect_b32 s7, 16, 0")
    e("s_load_dword s41, s[38:39], s7")
    def ipf():
        if not args.ipf: return
        e("s_cmp_ge_u32 s3, %d" % args.ipf)
        e("s_cbranch_scc1 L_noipf")
        e("s_cmp_ge_u32 s5, 24")
        e("s_cbranch_scc1 L_noipf")
        srd(52, 30, 2621440); srd(56, 32, 2621440)
        e("s_mul_i32 s46, s3, 24")
        e("s_add_u32 s46, s46, s5")
        pf_addr(80, 81, 82, 46, 512 * args.ipf0)
        e("buffer_load_dword v83, v80, s[52:55], 0 offen")
        e("buffer_load_dword v84, v80, s[56:59], 0 offen")
        g.l("L_noipf")
    ipf()
    def ipfh():
        if not args.ipfh: return
        e("s_cmp_ge_u32 s3, %d" % args.ipfh)
        e("s_cbranch_scc1 L_noipfh")
        e("s_cmp_eq_u32 s89, 0")
        e("s_cbranch_scc1 L_noipfh")
        srd(52, 30, 2621440); srd(56, 32, 2621440)
        e("s_mul_i32 s46, s3, 10")
        e("s_add_u32 s46, s46, s5")
        e("s_sub_u32 s46, s46, 20")
        pf_addr(80, 81, 82, 46, args.ipfh0)
        e("buffer_load_dword v83, v80, s[52:55], 0 offen")
        e("buffer_load_dword v84, v80, s[56:59], 0 offen")
        g.l("L_noipfh")
    ipfh()
    HD = 48; HM = 64
    order = (0, 1, 2, 3)
    if args.order3:
        e("s_setprio 3")
    elif args.order2:
        e("s_setprio 3")
        e("s_barrier")
    for b in order:
        S = "s[12:15]" if b < 2 else "s[16:19]"
        va = "v1" if b < 2 else "v3"
        e("buffer_load_dwordx4 %s, %s, %s, 0 offen offset:%d%s" % (vr(HD + 4 * b, 4), va, S, 1024 * (b & 1), NH))
    if args.order3:
        e("s_setprio 0")
    elif not args.order2:
        e("s_barrier")
    else:
        e("s_setprio 0")
    e("s_mul_i32 s20, s3, %d" % HSLOT)
    e("s_and_b32 s7, s3, 3")
    e("s_mul_i32 s21, s7, %d" % XCH)
    e("s_lshr_b32 s7, s3, 2")
    e("s_mul_i32 s7, s7, %d" % XG)
    e("s_add_u32 s21, s21, s7")
    e("s_add_u32 s21, s21, %d" % XB)
    for i in range(4):
        e("v_mov_b32 v%d, 0" % (4 + i))
    e("v_and_b32 v3, 31, v0")
    e("v_min_u32 v3, 27, v3")
    e("v_lshlrev_b32 v3, 4, v3")
    e("v_lshrrev_b32 v8, 5, v0")
    e("v_mul_u32_u24 v9, s23, v8")
    e("v_add3_u32 v3, v3, v9, s20")
    e("ds_write_b128 v3, v[4:7]")
    e("v_and_b32 v10, 31, v0")
    e("v_min_u32 v10, 16, v10")
    e("v_lshlrev_b32 v10, 2, v10")
    e("s_add_u32 s7, s49, 4")
    e("v_mul_u32_u24 v9, s7, v8")
    e("v_sub_u32 v10, v10, v9")
    e("s_lshl_b32 s7, s49, 1")
    e("s_add_u32 s7, s7, s21")
    e("s_add_u32 s7, s7, %d" % (X0OFF - 128))
    e("v_add_u32 v10, s7, v10")
    e("ds_write_b32 v10, v4")
    e("s_cmp_eq_u32 s89, 0")
    e("s_cbranch_scc1 L_nopad2")
    e("ds_write_b128 v3, v[4:7] offset:%d" % (2 * HCP_H))
    e("ds_write_b32 v10, v4 offset:%d" % XHALF)
    g.l("L_nopad2")
    VA = 1; VB = 2; VYW = 3
    e("v_add_u32 v40, s20, v1")
    e("v_add_u32 v46, s50, v40")
    e("v_add_u32 v47, s23, v40")
    e("v_add_u32 v76, s23, v46")
    e("v_and_b32 v41, 1, v0")
    e("v_xor_b32 v41, 1, v41")
    e("v_mul_u32_u24 v41, s23, v41")
    e("v_bfe_u32 v42, v0, 1, 3")
    e("v_lshlrev_b32 v42, 6, v42")
    e("v_lshrrev_b32 v43, 4, v0")
    e("v_lshlrev_b32 v44, 4, v43")
    e("v_add3_u32 v41, v41, v42, v44")
    e("v_add_u32 v%d, s20, v41" % VA)
    e("v_and_b32 v41, 1, v0")
    e("s_add_u32 s7, s49, 4")
    e("v_mul_u32_u24 v41, s7, v41")
    e("v_and_b32 v42, 15, v0")
    e("v_lshlrev_b32 v45, 2, v42")
    e("v_sub_u32 v41, v41, v45")
    e("v_add3_u32 v41, v41, v44, s21")
    e("v_add_u32 v%d, %d, v41" % (VB, X0OFF + 56))
    e("v_lshlrev_b32 v41, 8, v43")
    e("v_lshlrev_b32 v45, 3, v42")
    e("v_add3_u32 v41, v41, v45, s21")
    e("v_add_u32 v%d, %d, v41" % (VYW, X0OFF + 64))
    ACC = 8
    for i in range(32):
        e("v_mov_b32 v%d, 0" % (ACC + i))
    e("s_waitcnt lgkmcnt(0)")
    e("s_lshl_b32 s42, s40, 16")
    e("s_and_b32 s40, s40, 0xffff0000")
    e("s_lshl_b32 s43, s41, 16")
    e("s_and_b32 s41, s41, 0xffff0000")
    e("s_cmp_eq_u32 s45, 0")
    e("s_cselect_b32 s40, s42, s40")
    e("s_cselect_b32 s41, s43, s41")
    e("s_cmp_eq_u32 s89, 0")
    e("s_cselect_b32 s41, 0, s41")
    for n, b in enumerate(order):
        d = HD + 4 * b
        o = 68 + 4 * (n & 1)
        if b == 0:
            e("v_mov_b32 v%d, 0" % HM)
        else:
            e("v_readlane_b32 s46, v%d, 63" % (d - 1))
            if b == 2:
                e("s_cmp_eq_u32 s89, 0")
                e("s_cselect_b32 s46, s46, 0")
            else:
                e("s_nop 1")
            e("v_mov_b32 v%d, s46" % (HM + b))
        e("s_waitcnt vmcnt(%d)" % (3 - n))
        e("s_nop 0")
        e("v_mov_b32_dpp v%d, v%d wave_shr:1 row_mask:0xf bank_mask:0xf" % (HM + b, d + 3))
        if b in (0, 2):
            e("s_mov_b64 exec, 1")
            e("v_lshlrev_b32 v77, 16, v%d" % d)
            e("v_and_b32 v78, 0xffff0000, v%d" % d)
            e("v_add_f32 v77, s%d, v77" % (40 + (b >> 1)))
            e("v_cvt_pk_bf16_f32 v%d, v77, v78" % d)
            e("s_mov_b64 exec, -1")
        e("ds_write_b128 %s, %s offset:%d" % ("v40" if b < 2 else "v46", vr(d, 4), 448 + 1024 * (b & 1)))
        e("v_alignbit_b32 v%d, v%d, v%d, 16" % (o + 0, d + 0, HM + b))
        e("v_alignbit_b32 v%d, v%d, v%d, 16" % (o + 1, d + 1, d + 0))
        e("v_alignbit_b32 v%d, v%d, v%d, 16" % (o + 2, d + 2, d + 1))
        e("v_alignbit_b32 v%d, v%d, v%d, 16" % (o + 3, d + 3, d + 2))
        e("ds_write_b128 %s, %s offset:%d" % ("v47" if b < 2 else "v76", vr(o, 4), 448 + 1024 * (b & 1)))
    e("v_mov_b32 v4, %d" % CTL)
    e("v_mov_b32 v5, 1")
    e("s_waitcnt lgkmcnt(0)")
    stamp(1)
    if args.order3: e("s_barrier")
    e("s_cmp_lg_u32 s89, 0")
    e("s_cbranch_scc1 L_mfma_h")

    if args.layout:
        e("s_branch L_mfma_m")
        io = g.lines[mark_io:mark_mf]; mf = g.lines[mark_mf:]
        head = g.lines[:mark_io - 2] + ["    s_cmp_lt_u32 s3, 8", "    s_cbranch_scc1 L_io"]
        g.lines[:] = head + mf + ["L_io:"] + io + ["L_mfma_m:"]
    def wait_flags(blocks):
        lp = g.newlab("L_xwait")
        if args.poll1: e("s_mov_b64 exec, 1")
        g.l(lp)
        lo = blocks[0] & ~1
        n2 = (blocks[-1] - lo) // 2 + 1
        for i in range(n2):
            e("ds_read_b64 v[%d:%d], v4 offset:%d" % (120 + 2 * i, 121 + 2 * i, 4 * lo + 8 * i))
        e("s_waitcnt lgkmcnt(0)")
        r0 = 120 + blocks[0] - lo
        for b in blocks[1:]:
            e("v_and_b32 v%d, v%d, v%d" % (r0, r0, 120 + b - lo))
        e("s_nop 0")
        e("v_readfirstlane_b32 s7, v%d" % r0)
        e("s_bitcmp1_b32 s7, 2")
        e("s_cbranch_scc1 %s_done" % lp)
        e("s_sleep %d" % args.xsleep)
        e("s_branch %s" % lp)
        g.l(lp + "_done")
        if args.poll1: e("s_mov_b64 exec, -1")

    def front(steps, setbase, nregs, maxsets, waitfn, allA=False, hooks={}):
        if allA:
            nA = len(set(r[0] for st in steps for r in st[0] if r[1] == 'A'))
            bsz = 4 * max(sum(1 for r in st[0] if r[1] == 'B') for st in steps)
            nsets = min((nregs - 4 * nA) // bsz, len(steps) + 1)
            amap = {}; r = setbase
            for si, st in enumerate(steps):
                for (key, kind, ar, off) in st[0]:
                    if kind == 'A' and key not in amap: amap[key] = r; r += 4
            bbase = r
            def regs(si, reads):
                m = {}; r = bbase + (si % nsets) * bsz
                for (key, kind, ar, off) in reads:
                    if kind == 'A': m[key] = amap[key]
                    else: m[key] = r; r += 4
                return m
        else:
            setsize = 4 * max(len(st[0]) for st in steps)
            nsets = min(nregs // setsize, maxsets, len(steps) + 1)
            def regs(si, reads):
                m = {}; r = setbase + (si % nsets) * setsize
                for (key, kind, ar, off) in reads:
                    m[key] = r; r += 4
                return m
        assert nsets >= 2
        LA = nsets - 1
        issued = []; pre = set(); seenA = set()
        def rinstrs(si, kinds="AB"):
            reads = steps[si][0]; m = regs(si, reads); out = []
            for (key, kind, ar, off) in reads:
                if kind not in kinds or (si, key) in pre: continue
                if kind == 'A':
                    out.append(((si, key), "ds_read_b128 %s, v%d offset:%d" % (vr(m[key], 4), ar, off)))
                else:
                    out.append(((si, key), "ds_read_b64 %s, v%d offset:%d" % (vr(m[key], 2), ar, off)))
                    out.append(((si, key), "ds_read_b64 %s, v%d offset:%d" % (vr(m[key] + 2, 2), ar, off + 8)))
            return out
        done_upto = [0]
        def need(keys):
            keys = keys - pre
            if not keys: return
            last = max(i for i, k in enumerate(issued) if k in keys)
            if last < done_upto[0]: return
            n = min(len(issued) - 1 - last, 14)
            e("s_waitcnt lgkmcnt(%d)" % n)
            done_upto[0] = len(issued) - n
        if args.preA:
            for si in range(len(steps) if allA else min(LA, len(steps))):
                l_ = rinstrs(si, "A")
                for k, s_ in l_:
                    if k[1] not in seenA: e(s_)
                    if allA: seenA.add(k[1])
                for k, s_ in l_: pre.add(k)
        waitfn()
        for si in range(min(LA, len(steps))):
            for k, s_ in rinstrs(si):
                e(s_); issued.append(k)
        for si, (reads, mf) in enumerate(steps):
            m = regs(si, reads)
            nxt = rinstrs(si + LA) if si + LA < len(steps) else []
            nm = len(mf); pos = 0
            for i, (acc, ka, kb) in enumerate(mf):
                need({(si, ka), (si, kb)})
                e("v_mfma_f32_16x16x32_bf16 %s, %s, %s, %s" % (vr(acc, 4), vr(m[ka], 4), vr(m[kb], 4), vr(acc, 4)))
                tgt = min(len(nxt), (len(nxt) * (i + 1) + nm - 1) // nm)
                while pos < tgt:
                    k, s_ = nxt[pos]; e(s_); issued.append(k); pos += 1
            if si in hooks:
                for x in hooks[si]:
                    e(x)
                    if x.startswith("ds_"): issued.append(("hook", si))

    def mk_steps(qs, rlo, rhi, nblk, aoff, boff, accbase, tag, skip7=(), add7=()):
        steps = []
        for t in range(8):
            qq = [q for q in qs if not (t == 7 and q in skip7)] + (list(add7) if t == 7 else [])
            units = [(p, q) for q in qq for p in range(nblk) if rlo <= p + q <= rhi]
            units.sort(key=lambda u: (u[0], u[1]))
            reads = []; seen = set()
            for (p, q) in units:
                for key in (('B', q, tag, t), ('A', p, tag, t)):
                    if key in seen: continue
                    seen.add(key)
                    if key[0] == 'A': reads.append((key, 'A', VA, aoff + 512 * p + 64 * t))
                    else: reads.append((key, 'B', VB, boff + 512 * (nblk - 1 - q) + 64 * t))
            mf = [(accbase + 4 * (p + q - rlo), ('A', p, tag, t), ('B', q, tag, t)) for (p, q) in units]
            if mf: steps.append((reads, mf))
        return steps
    def merge(steps, maxfr):
        out = []
        for s in steps:
            if out and len(out[-1][0]) + len(s[0]) <= maxfr:
                out[-1] = (out[-1][0] + s[0], out[-1][1] + s[1])
            else:
                out.append(s)
        return out

    def yout(accs, cnt_idx):
        e("s_nop 7")
        for (a, off) in accs:
            e("ds_write_b64 v%d, %s offset:%d" % (VYW, vr(a, 2), off))
            e("ds_write_b64 v%d, %s offset:%d" % (VYW, vr(a + 2, 2), off + 128))
        if not args.nowait: e("s_waitcnt lgkmcnt(0)")
        e("s_mov_b64 exec, 1")
        if args.t6:
            for ci in (cnt_idx if isinstance(cnt_idx, tuple) else (2 * cnt_idx, 2 * cnt_idx + 1)):
                e("ds_add_u32 v4, v5 offset:%d" % (32 + 4 * ci))
        else:
            e("ds_add_u32 v4, v5 offset:%d" % (32 + 4 * cnt_idx))
        e("s_mov_b64 exec, -1")
        if args.wake:
            e("s_waitcnt lgkmcnt(0)")
            e("s_wakeup")

    fronts = [[int(c) for c in f] for f in args.mfronts.split(",")]
    sl = 2
    for fi, f in enumerate(fronts):
        if args.mprio: e("s_setprio %s" % args.mp[fi])
        def wf(f=f, sl=sl):
            wait_flags(f); stamp(sl)
        sl += 1
        before = set(q for ff in fronts[:fi] for q in ff); now = before | set(f)
        skip7 = tuple(q for q in f if q > 0 and (q - 1) not in now)
        add7 = tuple(q + 1 for q in f if (q + 1) in before)
        last = fi == len(fronts) - 1
        if args.t6 and last and f == [6, 7]:
            st_ = mk_steps([6], 4, 7, 8, 0, 0, ACC, 0) + mk_steps([7], 4, 7, 8, 0, 0, ACC, 0)
            hk = {10: ["s_nop 1", "ds_write_b64 v%d, %s offset:%d" % (VYW, vr(ACC + 8, 2), 2048), "ds_write_b64 v%d, %s offset:%d" % (VYW, vr(ACC + 10, 2), 2048 + 128),
                       "s_mov_b64 exec, 1", "ds_add_u32 v4, v5 offset:%d" % (32 + 4 * 6), "s_mov_b64 exec, -1"]}
            front(st_, 24, 96, 8, wf, allA=True, hooks=hk)
            yout([(ACC + 12, 2048 + XCP_M)], (7,))
        else:
            front(mk_steps(f, 4, 7, 8, 0, 0, ACC, 0, skip7=skip7, add7=add7), 24, 96, args.lastsets if last else args.maxsets, wf, allA=(args.preA >= 2 and last))
            if set(range(6)) <= now and not set(range(6)) <= before:
                yout([(ACC, 1024), (ACC + 4, 1024 + XCP_M)], 2)
            if last:
                yout([(ACC + 8, 0), (ACC + 12, XCP_M)], 3)
        stamp(sl); sl += 1
    stamp_flush()
    e("s_endpgm")

    g.l("L_mfma_h")
    hfronts = [[int(c) for c in f] for f in args.hfronts.split(",")]
    sl = 2
    for fi, f in enumerate(hfronts):
        if args.mprio: e("s_setprio %s" % args.hp[fi])
        def wf(f=f, sl=sl):
            wait_flags(f); stamp(sl)
        sl += 1
        s0 = mk_steps(f, 0, 3, 4, 0, 0, ACC, 0)
        s1 = mk_steps(f, 0, 3, 4, 2 * HCP_H, XHALF, ACC + 16, 1)
        steps = []
        for a, b in zip(s0, s1): steps += [a, b]
        front(steps, 40, 80, args.lastsets if fi == len(hfronts) - 1 else args.maxsets, wf)
        if 1 in f:
            yout([(ACC, 1024), (ACC + 4, 1024 + XCP_H), (ACC + 16, XHALF + 1024), (ACC + 20, XHALF + 1024 + XCP_H)], 0)
        if 3 in f:
            yout([(ACC + 8, 0), (ACC + 12, XCP_H), (ACC + 24, XHALF), (ACC + 28, XHALF + XCP_H)], 1)
        stamp(sl); sl += 1
    stamp_flush()
    e("s_endpgm")

    if args.pwg:
        g.l("L_pf")
        if args.wswap: e("s_xor_b32 s3, s3, 8")
        e("s_waitcnt lgkmcnt(0)")
        srd(12, 30, 2621440); srd(16, 32, 2621440); srd(20, 28, 2621440)
        e("s_lshl_b32 s46, s3, 1")
        e("s_add_u32 s46, s46, s5")
        e("s_sub_u32 s46, s46, 30")
        pf_addr(8, 9, 10, 46, 0)
        n = 20
        pf_addr(11, 9, 10, 3, 0)
        e("s_cmp_eq_u32 s5, 30")
        e("s_cselect_b32 s40, s12, s16")
        e("s_cselect_b32 s41, s13, s17")
        e("s_mov_b32 s42, 2621440")
        e("s_mov_b32 s43, 0x20000")
        for item in args.pprog.split(","):
            row = int(item[1:])
            e("s_mov_b32 s7, %d" % (row * 1280))
            if item[0] == "p":
                e("buffer_load_dword v%d, v11, s[40:43], s7 offen" % n); n += 1
            elif item[0] == "h":
                lp = g.newlab("L_ph")
                e("s_cmp_ge_u32 s3, 8")
                e("s_cbranch_scc1 %s" % lp)
                e("buffer_load_dword v%d, v11, s[40:43], s7 offen" % n); n += 1
                g.l(lp)
            else:
                t = {"k": "s[12:15]", "v": "s[16:19]", "q": "s[20:23]"}[item[0]]
                e("buffer_load_dword v%d, v8, %s, s7 offen" % (n, t)); n += 1
            e("s_barrier")
        e("s_waitcnt vmcnt(0)")
    g.l("L_end")
    e("s_endpgm")

    if args.layout >= 2:
        L = g.lines
        i_mf = L.index("L_mfma:"); i_io = L.index("L_io:"); i_pf = L.index("L_pf:"); i_end = L.index("L_end:")
        i_h = max(i for i in range(i_mf, i_io) if "buffer_load_dwordx4" in L[i]) + 1
        i_x = L.index("L_nobar2:") + 1
        part1 = L[i_mf:i_h] + ["    s_branch L_mfma2"]
        part2 = ["L_mfma2:"] + L[i_h:i_io]
        io1 = L[i_io:i_x] + ["    s_branch L_io2"]
        pf = L[i_pf:i_end] + ["    s_endpgm"]
        rest = ["L_io2:"] + L[i_x:i_pf]
        g.lines = L[:i_mf] + part1 + io1 + pf + part2 + rest + L[i_end:]
    out = HEADER
    out += "; @launch grid=(%d,1,1) block=(1024,1,1) lds=%d\n" % (NWG, LDS_BYTES)
    out += DOC
    out += '.amdgcn_target "amdgcn-amd-amdhsa--gfx950"\n.text\n.globl %s_kernel\n.p2align 8\n.type %s_kernel,@function\n' % (NAME, NAME)
    out += "\n".join(g.lines) + "\n"
    out += '''.section .rodata,"a"
.p2align 6
.amdhsa_kernel %s_kernel
  .amdhsa_next_free_vgpr 128
  .amdhsa_next_free_sgpr 102
  .amdhsa_accum_offset 128
  .amdhsa_group_segment_fixed_size 0
  .amdhsa_kernarg_size 120
  .amdhsa_user_sgpr_count 2
  .amdhsa_user_sgpr_kernarg_segment_ptr 1
  .amdhsa_system_sgpr_workgroup_id_x 1
  .amdhsa_float_denorm_mode_32 3
.end_amdhsa_kernel
''' % NAME
    return out

if __name__ == "__main__":
    ap = argparse.ArgumentParser()
    ap.add_argument("-o", default="cdna_kernels/%s.s" % NAME)
    ap.add_argument("--pwg", type=int, default=1)
    ap.add_argument("--hpf", type=int, default=1)
    ap.add_argument("--kvfirst", type=int, default=0)
    ap.add_argument("--ipf", type=int, default=0)
    ap.add_argument("--kfl", default="")
    ap.add_argument("--vfl", default="")
    ap.add_argument("--mswap", type=int, default=0)
    ap.add_argument("--t6", type=int, default=0)
    ap.add_argument("--nowait", type=int, default=0)
    ap.add_argument("--qearly", type=int, default=0)
    ap.add_argument("--qep", type=int, default=1)
    ap.add_argument("--ksplit", type=int, default=1)
    ap.add_argument("--hpf0", type=int, default=0)
    ap.add_argument("--hpf0w", type=int, default=4)
    ap.add_argument("--hpf0r", type=int, default=512)
    ap.add_argument("--wbone", type=int, default=0)
    ap.add_argument("--wbfl", default="sc1")
    ap.add_argument("--wake", type=int, default=0)
    ap.add_argument("--xsleep", type=int, default=1)
    ap.add_argument("--ysleep2", type=int, default=1)
    ap.add_argument("--hst", default="")
    ap.add_argument("--hst1", type=int, default=0)
    ap.add_argument("--wb", type=int, default=0)
    ap.add_argument("--wbm", type=int, default=4)
    ap.add_argument("--order3", type=int, default=1)
    ap.add_argument("--layout", type=int, default=1)
    ap.add_argument("--poll1", type=int, default=1)
    ap.add_argument("--ysleep", type=int, default=8)
    ap.add_argument("--hack", type=int, default=0)
    ap.add_argument("--rot", type=int, default=2)
    ap.add_argument("--qrot", type=int, default=1)
    ap.add_argument("--preA", type=int, default=2)
    ap.add_argument("--cpf", type=int, default=0)
    ap.add_argument("--ipfh", type=int, default=0)
    ap.add_argument("--ipfh0", type=int, default=512)
    ap.add_argument("--wswap", type=int, default=1)
    ap.add_argument("--ioprio", type=int, default=1)
    ap.add_argument("--mp", default="3210")
    ap.add_argument("--hp", default="10")
    ap.add_argument("--order2", type=int, default=0)
    ap.add_argument("--lastsets", type=int, default=2)
    ap.add_argument("--ipf0", type=int, default=1)
    ap.add_argument("--pprog", default="k1024,v1024,q1024,q1706")
    ap.add_argument("--stamp", type=int, default=0)
    ap.add_argument("--nth", type=int, default=0)
    ap.add_argument("--horder", type=int, default=0)
    ap.add_argument("--maxsets", type=int, default=2)
    ap.add_argument("--mprio", type=int, default=1)
    ap.add_argument("--mfronts", default="01,23,45,67")
    ap.add_argument("--hfronts", default="01,23")
    a = ap.parse_args()
    open(a.o, "w").write(build(a))
    print("wrote", a.o, "LDS", LDS_BYTES)
```
